```python
import torch

def _softmax(x, axis=-1):
    return torch.softmax(x, dim=axis)
def _gelu(x):
    return torch.nn.functional.gelu(x, approximate="tanh")
def _silu(x):
    return torch.nn.functional.silu(x)
def _sigmoid(x):
    return torch.sigmoid(x)
def _layernorm(x, axis=-1, eps=1e-5):
    m = x.mean(dim=axis, keepdim=True)
    v = x.var(dim=axis, keepdim=True, unbiased=False)
    return (x - m) / torch.sqrt(v + eps)
def _scatter_add(tgt, idx, src, axis=0):
    return tgt.clone().index_add_(axis, idx, src)
def _segment_sum(src, seg, n):
    out = torch.zeros((n,) + src.shape[1:], dtype=src.dtype)
    return out.index_add_(0, seg, src)
def _pad(x, pw):
    flat = tuple(v for pair in reversed(pw) for v in pair)
    return torch.nn.functional.pad(x, flat)

kernel_name = 'gated_mix__softmax_full_mha__glu_gated_geglu__prompt'

def setup_inputs():

    _w = (lambda a: (lambda t: t.to(torch.bfloat16) if t.is_floating_point() else t)(torch.as_tensor(a)))
    def _A_setup():
        B, S, D = 1, 2048, 1024
        return {
            "x": _w((lambda *s: torch.randn(*s, dtype=torch.bfloat16) * 0.05)(B, S, D)),
            "wqkv": _w((lambda *s: torch.randn(*s, dtype=torch.bfloat16) * 0.4)(D, 3 * D)),
            "wo": _w((lambda *s: torch.randn(*s, dtype=torch.bfloat16) * 0.05)(D, D)),
        }
    _A_in = _A_setup()

    def _B_setup():
        B, S, Dm, Df = 1, 2048, 1024, 3584
        return {
            "x": _w((lambda *s: torch.randn(*s, dtype=torch.bfloat16) * 0.05)(B, S, Dm)),
            "w_gate": _w((lambda *s: torch.randn(*s, dtype=torch.bfloat16) * 1.6)(Dm, Df) * (Dm ** -0.5)),
            "w_up": _w((lambda *s: torch.randn(*s, dtype=torch.bfloat16) * 1.6)(Dm, Df) * (Dm ** -0.5)),
            "w_down": _w((lambda *s: torch.randn(*s, dtype=torch.bfloat16) * 1.6)(Df, Dm) * (Df ** -0.5)),
        }
    _B_in = _B_setup()

    return {
        "A_x": _A_in["x"],
        "A_wqkv": _A_in["wqkv"],
        "A_wo": _A_in["wo"],
        "B_x": _B_in["x"],
        "B_w_gate": _B_in["w_gate"],
        "B_w_up": _B_in["w_up"],
        "B_w_down": _B_in["w_down"],
        "gate_w": _w((lambda *s: torch.randn(*s, dtype=torch.bfloat16) * 0.05)(1024) * 16.0),
    }

def reference(A_x, A_wqkv, A_wo, B_x, B_w_gate, B_w_up, B_w_down, gate_w):
    def _A_ref(x, wqkv, wo):
        B, S, D = x.shape
        H = 32; Dh = D // H
        qkv = (lambda x, *d: x.permute(*d))((x @ wqkv).reshape(B, S, 3, H, Dh), 2, 0, 3, 1, 4)
        q, k, v = qkv[0], qkv[1], qkv[2]
        scale = Dh ** -0.5
        scores = torch.einsum("bhqd,bhkd->bhqk", q, k) * scale
        p = _softmax(scores, axis=-1)
        o = torch.einsum("bhqk,bhkd->bhqd", p, v)
        return (lambda x, *d: x.permute(*d))(o, 0, 2, 1, 3).reshape(B, S, D) @ wo

    def _B_ref(x, w_gate, w_up, w_down):
        g = torch.einsum("bsd,df->bsf", x, w_gate)
        u = torch.einsum("bsd,df->bsf", x, w_up)
        h = _gelu(g) * u
        return torch.einsum("bsf,fd->bsd", h, w_down)

    x = A_x
    g = _sigmoid((x * gate_w).sum(-1, keepdims=True))
    a = _A_ref(x, A_wqkv, A_wo)
    b = _B_ref(x, B_w_gate, B_w_up, B_w_down)
    return g * a + (1 - g) * b
```

```python
import re

REG_RE = re.compile(r'^(-?)(\|?)([vas])(?:(\d+)|\[(\d+):(\d+)\])\|?$')

def regs_of(tok):
    tok = tok.strip()
    if tok in ('vcc', 'vcc_lo', 'vcc_hi'): return {'vcc'}
    if tok in ('exec', 'exec_lo', 'exec_hi'): return {'exec'}
    if tok == 'm0': return {'m0'}
    m = REG_RE.match(tok)
    if not m: return set()
    k = m.group(3)
    if m.group(4) is not None: return {f'{k}{int(m.group(4))}'}
    return {f'{k}{i}' for i in range(int(m.group(5)), int(m.group(6)) + 1)}

TRANS = ('v_exp_f32', 'v_log_f32', 'v_rcp_f32', 'v_rsq_f32', 'v_sqrt_f32', 'v_sin_f32', 'v_cos_f32')

class Ins:
    def __init__(self, text, tag=None, need=None):
        self.text = text.strip()
        self.tag = tag
        self.need = need
        self.wait_vm = None
        self.wait_lgkm = None
        self.nops = 0
        self.parse()
    def parse(self):
        t = self.text.split(';')[0].strip()
        self.is_label = t.endswith(':')
        self.op = ''
        self.w = set(); self.r = set(); self.kind = 'other'
        self.srcc = set(); self.srcab = set()
        if not t or self.is_label or t.startswith('.'):
            self.kind = 'pseudo'; return
        parts = t.split(None, 1)
        op = self.op = parts[0]
        rest = parts[1] if len(parts) > 1 else ''
        ops = [x.strip() for x in re.split(r',(?![^\[]*\])', rest)] if rest else []
        mods = ''
        if ops:
            sp = ops[-1].split(None, 1)
            if len(sp) > 1: ops[-1], mods = sp[0], sp[1]
        self.mods = mods
        R = lambda L: set().union(*[regs_of(x) for x in L]) if L else set()
        if op.startswith('v_mfma') or op.startswith('v_smfmac'):
            self.kind = 'mfma'
            self.w = regs_of(ops[0]); self.srcab = R(ops[1:3])
            if op.startswith('v_smfmac'):
                self.srcc = set(self.w); self.srcab |= regs_of(ops[3])
            else:
                self.srcc = regs_of(ops[3])
            self.r = self.srcab | self.srcc
            self.passes = 8 if '32x32' in op else 4
        elif op.startswith('buffer_') or op.startswith('global_'):
            self.kind = 'vmem'
            allm = ' ' + mods + ' '
            if op in ('buffer_inv', 'buffer_wbl2'):
                pass
            elif ' lds ' in allm or 'load_lds' in op:
                self.r = R(ops) | {'m0'}; self.dma = True
            elif 'load' in op:
                self.w = regs_of(ops[0]); self.r = R(ops[1:])
            elif 'store' in op:
                self.r = R(ops)
                self.stdata = regs_of(ops[0]) if op.startswith('buffer_') else regs_of(ops[1])
                self.wide = 'x4' in op or 'x3' in op
            elif 'atomic' in op:
                self.r = R(ops)
                if ' sc0 ' in allm: self.w = regs_of(ops[0])
            else:
                raise ValueError(t)
        elif op.startswith('ds_'):
            self.kind = 'ds'
            if 'read' in op or 'permute' in op or 'swizzle' in op:
                self.w = regs_of(ops[0]); self.r = R(ops[1:])
            else:
                self.r = R(ops)
        elif op.startswith('s_load') or op in ('s_memtime', 's_memrealtime'):
            self.kind = 'smem'
            self.w = regs_of(ops[0]); self.r = R(ops[1:])
        elif op.startswith('v_'):
            self.kind = 'valu'
            if op.startswith('v_permlane') and 'swap' in op:
                self.w = R(ops[:2]); self.r = R(ops[:2])
            elif op.startswith('v_cmp'):
                self.w = regs_of(ops[0]); self.r = R(ops[1:])
                if op.startswith('v_cmpx'): self.w |= {'exec'}
            elif op in ('v_add_co_u32', 'v_sub_co_u32', 'v_addc_co_u32', 'v_subb_co_u32'):
                self.w = R(ops[:2]); self.r = R(ops[2:])
            elif op == 'v_nop':
                pass
            else:
                self.w = regs_of(ops[0]); self.r = R(ops[1:])
                if op.startswith('v_fmac') or op.startswith('v_dot2c') or op.startswith('v_writelane') or 'dpp' in op or 'row_' in mods or 'quad_perm' in mods:
                    self.r |= self.w
                if op.startswith('v_cndmask') and len(ops) == 3: self.r |= {'vcc'}
            self.trans = op.replace('_e32', '').replace('_e64', '') in TRANS
            self.dpp = ('row_' in mods) or ('quad_perm' in mods) or ('wave_' in mods)
        elif op.startswith('s_'):
            self.kind = 'salu'
            if op in ('s_waitcnt', 's_barrier', 's_nop', 's_sleep', 's_setprio', 's_endpgm', 's_branch'):
                self.kind = {'s_waitcnt': 'wait', 's_nop': 'nop'}.get(op, 'sctl')
                if op == 's_nop': self.nopn = int(ops[0], 0) + 1
                if op == 's_waitcnt':
                    m = re.search(r'vmcnt\((\d+)\)', t); self.xvm = int(m.group(1)) if m else None
                    m = re.search(r'lgkmcnt\((\d+)\)', t); self.xl = int(m.group(1)) if m else None
            elif op.startswith('s_cbranch'):
                self.kind = 'sctl'
                if 'vcc' in op: self.r = {'vcc'}
                if 'exec' in op: self.r = {'exec'}
            elif op.startswith('s_cmp') or op.startswith('s_bitcmp'):
                self.r = R(ops)
            elif op in ('s_setpc_b64',):
                self.r = R(ops)
            else:
                self.w = regs_of(ops[0]); self.r = R(ops[1:])
                if 'saveexec' in op: self.w |= {'exec'}; self.r |= {'exec'}
                if op in ('s_addk_i32', 's_mulk_i32') or op.startswith('s_cmov'): self.r |= self.w
        else:
            raise ValueError('cannot parse: ' + t)

class Prog:
    def __init__(self):
        self.segs = {}
        self.order = []
        self.paths = []
        self.cur = None
        self.lgkm_clamp = 12
    def seg(self, name):
        assert name not in self.segs, name
        self.segs[name] = []; self.order.append(name); self.cur = self.segs[name]
        return self.cur
    def __call__(self, text, tag=None):
        for line in text.strip('\n').split('\n'):
            l = line.split(';')[0].strip()
            if l: self.cur.append(Ins(l, tag))
    def add(self, ins): self.cur.append(ins)
    def need(self, *tags): self.cur.append(Ins('', need=list(tags)))
    def path(self, *names):
        for n in names: assert n in self.segs, n
        self.paths.append(list(names))

    def _sim_waits(self, names):
        changed = False
        vm = []; lg = []
        for n in names:
            for ins in self.segs[n]:
                nv = nl = None
                if ins.kind == 'wait':
                    if ins.xvm is not None: vm = vm[len(vm) - ins.xvm:] if ins.xvm < len(vm) else vm
                    if ins.xl is not None:
                        if ins.xl == 0: lg = []
                        elif not any(e[2] for e in lg): lg = lg[len(lg) - ins.xl:] if ins.xl < len(lg) else lg
                    continue
                touch = ins.r | ins.w
                def req(q, pred):
                    idx = [i for i, e in enumerate(q) if pred(e)]
                    return None if not idx else len(q) - 1 - max(idx)
                if ins.need is not None:
                    nv = req(vm, lambda e: e[1] in ins.need); nl = req(lg, lambda e: e[1] in ins.need)
                elif touch:
                    tv = ins.r if ins.kind == 'vmem' else touch
                    tl = ins.r if (ins.kind == 'ds' and not any(e[2] for e in lg)) else touch
                    nv = req(vm, lambda e: e[0] & tv); nl = req(lg, lambda e: e[0] & tl)
                if ins.kind == 'ds' and len(lg) >= 15: nl = 14 if nl is None else min(nl, 14)
                if ins.kind == 'vmem' and len(vm) >= 63: nv = 62 if nv is None else min(nv, 62)
                if nl is not None and any(e[2] for e in lg): nl = 0
                if nv is not None:
                    nv = min(nv, 63)
                    if ins.wait_vm is None or nv < ins.wait_vm: ins.wait_vm = nv; changed = True
                if nl is not None:
                    nl = min(nl, self.lgkm_clamp)
                    if ins.wait_lgkm is None or nl < ins.wait_lgkm: ins.wait_lgkm = nl; changed = True
                if ins.wait_vm is not None and ins.wait_vm < len(vm): vm = vm[len(vm) - ins.wait_vm:]
                if ins.wait_lgkm is not None and ins.wait_lgkm < len(lg):
                    if ins.wait_lgkm == 0: lg = []
                    elif not any(e[2] for e in lg): lg = lg[len(lg) - ins.wait_lgkm:]
                if ins.kind == 'vmem':
                    vm.append((set(ins.w), ins.tag, False))
                    if len(vm) > 63: self.warn.add(f'vmcnt overflow {len(vm)} in {n}: {ins.text}')
                elif ins.kind == 'ds':
                    lg.append((set(ins.w), ins.tag, False))
                    if len(lg) > 15: self.warn.add(f'lgkmcnt overflow {len(lg)} in {n}: {ins.text}')
                elif ins.kind == 'smem':
                    lg.append((set(ins.w), ins.tag, True))
        return changed

    @staticmethod
    def _haz(p, c):
        need = 0
        V = lambda s: {x for x in s if x[0] in 'va' and x != 'vcc'}
        S = lambda s: {x for x in s if x[0] == 's' or x == 'vcc'}
        if p.kind == 'valu':
            pw = V(p.w); ps = S(p.w)
            if c.kind == 'mfma':
                if pw & c.r: need = max(need, 2)
                if 'exec' in p.w: need = max(need, 4)
            if c.kind == 'valu':
                if c.op.startswith('v_permlane') and pw & c.r: need = max(need, 2)
                if (c.op.startswith('v_readfirstlane') or c.op.startswith('v_readlane')) and pw & c.r: need = max(need, 1)
                if c.dpp and pw & c.r: need = max(need, 2)
                if p.trans and not c.trans and pw & c.r: need = max(need, 1)
                if p.trans and c.trans and pw & c.r: need = max(need, 1)
                if ps & c.r: need = max(need, 4 if (c.op.startswith('v_readlane') or c.op.startswith('v_writelane')) else 2)
                if 'exec' in p.w and (c.dpp or 'lane' in c.op): need = max(need, 5)
                if ('op_sel' in p.mods and 'pk' not in p.op) and pw & (c.r | c.w): need = max(need, 1)
            if c.kind == 'vmem' and ps & c.r: need = max(need, 5)
            if c.kind in ('salu', 'sctl') and ps & c.r: need = max(need, 1)
        if p.kind == 'salu' and 'm0' in p.w and c.kind == 'vmem' and getattr(c, 'dma', False): need = max(need, 1)
        if p.kind == 'vmem' and getattr(p, 'wide', False):
            if p.stdata & c.w: need = max(need, 2)
        if p.kind == 'mfma':
            big = p.passes == 8
            if c.kind == 'mfma':
                if p.w & c.srcab: need = max(need, 12 if big else 8)
                if p.w & c.srcc:
                    if not (c.srcc == p.w and c.passes == p.passes): need = max(need, 10 if big else 6)
                elif p.w & c.w:
                    need = max(need, 10 if big else 6)
            elif c.kind in ('valu', 'vmem', 'ds'):
                if p.w & (c.r | c.w): need = max(need, 12 if big else 8)
                if c.kind == 'valu' and (p.srcc & c.w): need = max(need, 7 if big else 3)
        return need

    def _sim_haz(self, names):
        changed = False
        hist = []
        for n in names:
            for ins in self.segs[n]:
                if ins.kind == 'pseudo' and ins.need is None: continue
                has_wait = ins.wait_vm is not None or ins.wait_lgkm is not None
                if ins.need is not None:
                    if has_wait: hist = [(p, d + 1) for p, d in hist]
                    continue
                pre = ins.nops + (1 if has_wait else 0)
                req = 0
                for p, d in hist:
                    k = self._haz(p, ins)
                    if k > d + pre: req = max(req, k - d - (1 if has_wait else 0))
                if req > ins.nops:
                    ins.nops = req; changed = True
                    pre = ins.nops + (1 if has_wait else 0)
                step = pre + (ins.nopn if ins.kind == 'nop' else 1)
                hist = [(p, d + step) for p, d in hist if d + step < 21]
                hist.append((ins, 0))
        return changed

    def finalize(self):
        self.warn = set()
        covered = set(n for p in self.paths for n in p)
        for n in self.order:
            assert n in covered, f'segment {n} is on no path'
        for _ in range(20):
            if not any([self._sim_waits(p) for p in self.paths]): break
        else: raise RuntimeError('waits do not converge')
        for _ in range(20):
            if not any([self._sim_haz(p) for p in self.paths]): break
        else: raise RuntimeError('hazards do not converge')
        for w in sorted(self.warn): print('WARN', w)

    def text(self):
        out = []
        for n in self.order:
            out.append(f'; ---- {n}')
            for ins in self.segs[n]:
                k = ins.nops
                while k > 0:
                    c = min(k, 16); out.append(f'  s_nop {c-1}'); k -= c
                w = []
                if ins.wait_vm is not None: w.append(f'vmcnt({ins.wait_vm})')
                if ins.wait_lgkm is not None: w.append(f'lgkmcnt({ins.wait_lgkm})')
                if w: out.append('  s_waitcnt ' + ' '.join(w))
                if ins.text: out.append(ins.text if (ins.is_label or ins.text.startswith('.')) else '  ' + ins.text)
        return '\n'.join(out) + '\n'

    def stats(self):
        for n in self.order:
            L = self.segs[n]
            cnt = {}
            for i in L: cnt[i.kind] = cnt.get(i.kind, 0) + 1
            nn = sum(1 for i in L if i.nops); nw = sum(1 for i in L if i.wait_vm is not None or i.wait_lgkm is not None)
            print(f'{n:14s} {cnt} autowaits={nw} autonops={nn}({sum(i.nops for i in L)})')

def interleave(backbone, fillers):
    out = []
    for i, b in enumerate(backbone):
        out.append(b)
        out.extend(fillers.get(i, []))
    return out
```

```python
import sys, math, struct
from asmfw import *

NAME = 'gated_mix__softmax_full_mha__glu_gated_geglu__prompt'
M16 = 'v_mfma_f32_16x16x32_bf16'
M32 = 'v_mfma_f32_32x32x16_bf16'

class Cfg:
    diag = False
    clk = 's_memrealtime'
    ts_extra = ()
    stop_after = None
    pf_dist = 3
    bar_grp = 34
    zero_first = True
    kv_sig_at = 5
    kv_poll_at = 11
    s3_dist = 7
    s3_bar = 27
    part_sig = 15
    part_poll = 17*32+8
    force_fallback = False
    spin_max = 1 << 20

def f2u(x): return struct.unpack('<I', struct.pack('<f', x))[0]

WS_KV   = 0
WS_H    = 8 << 20
WS_O    = 22 << 20
WS_PART = 26 << 20
WS_FLAG = 34 << 20
WS_TS   = 35 << 20
WS_DBG  = 36 << 20
WS_SIZE = 40 << 20

sW, sCB, sRB, sX8, sJ = 3, 4, 5, 6, 7
rX, rQ, rG, rWS, rWD, rWO, rOUT, rDBG, rPF, rGW = 8, 12, 16, 20, 24, 28, 32, 36, 40, 44
sKX, sKQ, sKG, sKP, sPS = 48, 49, 50, 51, 52
sBUF = 53
sM = [54, 55, 56, 57, 58]
sDLT, sCNT = 59, 60
sT0, sT1, sT2, sT3 = 61, 62, 63, 64
sIDX, sMI, sNI, sKH = 65, 66, 67, 68
sA, sB, sC, sD, sE = 69, 70, 71, 72, 73
sK = 76
sEX = 78
sGR = 80
sKVB, sKVN, sKVO, sKVO2, sSLOT, sIT = 81, 82, 83, 84, 85, 86
sWD, sWD2, sWM, sHL, sRDL, sSL, sPO = 87, 88, 89, 90, 91, 92, 93
sHK = 94
sTS = 74
vTS = 0
def srd(r): return f's[{r}:{r+3}]'
def vr(a, n): return f'v[{a}:{a+n-1}]' if n > 1 else f'v{a}'
def ar(a, n): return f'a[{a}:{a+n-1}]' if n > 1 else f'a{a}'

LX, LQ, LG = 0, 32768, 45056
LBUF = 73728
LDS_BYTES = 163840

vLANE = 1
vDX = 2
vDQ = 10
vDG = 13
vPFA, vPFD = 20, 21
vRX = 22
vRQ = 24
vRG = 26
vQF = 32
ACC_V0 = 48
aXF = 112
aWR = 144
def acc(nt, tt):
    if nt < 6: return ('a', 16 + (nt * 4 + tt) * 4)
    if nt == 19: return ('a', tt * 4)
    return ('v', ACC_V0 + ((nt - 6) * 4 + tt) * 4)
def accs(nt, tt):
    f, b = acc(nt, tt); return f'{f}[{b}:{b+3}]'

vKVR, vKVD, vLN16, vPA, vPD = 2, 3, 4, 24, 25
vWD = 8
vONE = 16
vNM = [48, 64]; vS = [80, 96]; vO = [112, 128]; vP = [144, 152]
vK = [160, 168]; vV = [176, 184]; vL = [192, 196]
vR3 = 20
vWO = 26
vR4 = 30
vGA, vOA, vG = 2, 3, 6
vA3 = 64
vWR = 128
vA4 = 160
vPP = 192

class Gen:
    def __init__(self, cfg):
        self.c = cfg
        self.P = Prog()
        self.nts = 0
        self.main = []

    def ts(self, name=None):
        if not self.c.diag: return
        P = self.P
        if name is not None and name not in self.c.ts_extra: return
        P(f'{self.c.clk} s[{sTS}:{sTS+1}]')
        P('s_waitcnt lgkmcnt(0)')
        P(f'v_writelane_b32 v{vTS}, s{sTS}, {self.nts}')
        self.nts += 1

    def mksrd(self, r, lo, size):
        self.P(f'''
        s_mov_b32 s{r}, s{lo}
        s_mov_b32 s{r+1}, s{lo+1}
        s_mov_b32 s{r+2}, {size}
        s_mov_b32 s{r+3}, 0x20000''')

    def prologue(self):
        P, c = self.P, self.c
        P.seg('entry'); self.main.append('entry')
        KA = 80
        P(f'''
        s_cmp_ge_u32 s2, 256
        s_cbranch_scc1 L_end
        {(c.clk + ' s[74:75]') if c.diag else ''}
        s_load_dwordx16 s[{KA}:{KA+15}], s[0:1], 0
        s_load_dwordx4 s[{KA+16}:{KA+19}], s[0:1], 64
        s_load_dwordx2 s[{KA+20}:{KA+21}], s[0:1], 80
        v_lshrrev_b32 v2, 6, v0
        v_and_b32 v{vLANE}, 63, v0
        s_and_b32 s{sX8}, s2, 7
        v_readfirstlane_b32 s{sW}, v2
        s_lshr_b32 s{sJ}, s2, 3
        s_and_b32 s{sT0}, s{sJ}, 3
        s_lshl_b32 s{sCB}, s{sX8}, 2
        s_add_u32 s{sCB}, s{sCB}, s{sT0}
        s_lshr_b32 s{sRB}, s{sJ}, 2
        s_lshl_b32 s{sIDX}, s{sCB}, 3
        s_add_u32 s{sIDX}, s{sIDX}, s{sRB}
        s_and_b32 s{sKH}, s{sX8}, 1
        s_lshr_b32 s{sMI}, s{sX8}, 1
        s_lshl_b32 s{sMI}, s{sMI}, 2
        s_lshr_b32 s{sT0}, s{sJ}, 3
        s_add_u32 s{sMI}, s{sMI}, s{sT0}
        s_and_b32 s{sNI}, s{sJ}, 7
        ''')
        L = vLANE
        P(f'''
        s_and_b32 s{sT0}, s{sJ}, 3
        s_lshl_b32 s{sT0}, s{sT0}, 6
        s_lshl_b32 s{sT1}, s{sRB}, 8
        s_add_u32 s{sT0}, s{sT0}, s{sT1}
        v_add_u32 v27, s{sT0}, v{L}
        v_lshlrev_b32 v27, 11, v27
        s_lshl_b32 s{sT0}, s{sJ}, 1
        v_cmp_lt_u32 vcc, 6, v{L}
        v_mov_b32 v31, 0x80000000
        v_cndmask_b32 v28, 0, 1, vcc
        v_mul_u32_u24 v29, 7, v28
        v_sub_u32 v29, v{L}, v29
        v_add_u32 v28, s{sT0}, v28
        v_mul_u32_u24 v28, 7168, v28
        v_lshl_add_u32 v28, v29, 7, v28
        s_mul_i32 s{sT1}, s{sX8}, 896
        v_add_u32 v28, s{sT1}, v28
        v_cmp_gt_u32 vcc, 14, v{L}
        s_nop 1
        v_cndmask_b32 v28, v31, v28, vcc
        v_cmp_lt_u32 vcc, 5, v{L}
        s_nop 1
        v_cndmask_b32 v29, 0, 1, vcc
        v_mul_u32_u24 v30, 6, v29
        v_sub_u32 v30, v{L}, v30
        v_add_u32 v29, s{sT0}, v29
        v_mul_u32_u24 v29, 6144, v29
        v_lshrrev_b32 v{vPFD}, 1, v30
        v_lshl_add_u32 v29, v{vPFD}, 11, v29
        v_and_b32 v30, 1, v30
        v_lshl_add_u32 v29, v30, 7, v29
        s_lshl_b32 s{sT1}, s{sX8}, 8
        v_add_u32 v29, s{sT1}, v29
        v_cmp_gt_u32 vcc, 12, v{L}
        s_nop 1
        v_cndmask_b32 v29, v31, v29, vcc
        s_cmp_eq_u32 s{sW}, 0
        s_cselect_b64 vcc, -1, 0
        v_cndmask_b32 v{vPFA}, v28, v27, vcc
        s_cmp_eq_u32 s{sW}, 3
        s_cselect_b64 vcc, -1, 0
        v_cndmask_b32 v{vPFA}, v{vPFA}, v29, vcc
        ''')
        P(f'''
        s_mov_b32 s{sKP}, 0
        s_waitcnt lgkmcnt(0)
        ''')
        if c.diag:
            P(f'v_writelane_b32 v{vTS}, s{sTS}, 0'); self.nts = 1
        self.mksrd(rX, KA + 0, 2048 * 1024 * 2)
        self.mksrd(rQ, KA + 2, 1024 * 3072 * 2)
        P(f'''
        s_cmp_lt_u32 s{sW}, 2
        s_cselect_b32 s{rG}, s{KA+8}, s{KA+10}
        s_cselect_b32 s{rG+1}, s{KA+9}, s{KA+11}
        s_mov_b32 s{rG+2}, {1024*3584*2}
        s_mov_b32 s{rG+3}, 0x20000
        s_cmp_eq_u32 s{sW}, 0
        s_cselect_b32 s{rPF}, s{rX}, s{rG}
        s_cselect_b32 s{rPF+1}, s{rX+1}, s{rG+1}
        s_cselect_b32 s{rPF+2}, s{rX+2}, s{rG+2}
        s_mov_b32 s{sPS}, {64*7168}
        s_cselect_b32 s{sPS}, 128, s{sPS}
        s_cmp_eq_u32 s{sW}, 3
        s_cselect_b32 s{rPF}, s{rQ}, s{rPF}
        s_cselect_b32 s{rPF+1}, s{rQ+1}, s{rPF+1}
        s_cselect_b32 s{rPF+2}, s{rQ+2}, s{rPF+2}
        s_cselect_b32 s{sPS}, {64*6144}, s{sPS}
        s_mov_b32 s{rPF+3}, 0x20000
        ''')
        self.ts('srd')
        for s in range(c.pf_dist):
            P(self.pf_ins(), tag='pf')
            P(f's_add_u32 s{sKP}, s{sKP}, s{sPS}')
        if 'pf0' in c.ts_extra:
            P('s_waitcnt vmcnt(0)'); self.ts('pf0')
        P(f'''
        s_lshl_b32 s{sT0}, s{sRB}, 8
        s_lshl_b32 s{sT1}, s{sW}, 6
        s_add_u32 s{sT0}, s{sT0}, s{sT1}
        v_lshrrev_b32 v27, 3, v{L}
        v_add_u32 v27, s{sT0}, v27
        v_lshlrev_b32 v27, 11, v27
        v_and_b32 v28, 7, v{L}
        v_lshrrev_b32 v29, 4, v{L}
        v_xor_b32 v28, v28, v29
        v_lshl_add_u32 v{vDX}, v28, 4, v27
        v_xor_b32 v28, 4, v28
        v_lshl_add_u32 v{vDX+1}, v28, 4, v27
        v_add_u32 v{vDX+1}, {8*2048 - 1024}, v{vDX+1}
        ''')
        for i in range(2, 8):
            P(f'v_add_u32 v{vDX+i}, {(i & ~1) * 8 * 2048 - 1024 * ((i & 3) & ~1)}, v{vDX + (i & 1)}')
        P(f'''
        v_lshrrev_b32 v27, 2, v{L}
        v_and_b32 v28, 3, v27
        v_bfe_u32 v29, v27, 2, 1
        v_lshl_or_b32 v28, v29, 3, v28
        v_bfe_u32 v30, v27, 3, 1
        v_lshl_or_b32 v28, v30, 2, v28
        s_lshl_b32 s{sT0}, s{sW}, 4
        v_add_u32 v28, s{sT0}, v28
        v_mul_u32_u24 v28, 6144, v28
        v_and_b32 v30, 3, v{L}
        v_lshlrev_b32 v29, 1, v29
        v_xor_b32 v30, v30, v29
        v_lshl_add_u32 v28, v30, 4, v28
        s_lshl_b32 s{sT0}, s{sCB}, 6
        v_add_u32 v{vDQ}, s{sT0}, v28
        v_add_u32 v{vDQ+1}, {2048-1024}, v{vDQ}
        v_add_u32 v{vDQ+2}, {4096-2048}, v{vDQ}
        ''')
        P(f'''
        s_lshl_b32 s{sM[0]}, s{sW}, 13
        s_add_u32 s{sM[1]}, s{sM[0]}, 4096
        s_mul_i32 s{sM[2]}, s{sW}, 3072
        s_add_u32 s{sM[2]}, s{sM[2]}, {LQ}
        s_mul_i32 s{sM[3]}, s{sW}, 7168
        s_add_u32 s{sM[3]}, s{sM[3]}, {LG}
        s_add_u32 s{sM[4]}, s{sM[3]}, 4096
        s_mov_b32 s{sBUF}, 0
        s_mov_b32 s{sDLT}, {LBUF}
        s_mov_b32 s{sKX}, 0
        s_mov_b32 s{sKQ}, 0
        s_mov_b32 s{sKG}, 0
        ''')
        dl = self.p1_dma_list()
        early = dl[0:9] + dl[18:23]; lateg = dl[9:18]
        for x in early: P.add(x)
        P(f'''
        s_and_b32 s{sT0}, s{sW}, 1
        s_mul_i32 s{sT0}, s{sT0}, 448
        s_mul_i32 s{sT1}, s{sCB}, 224
        ''')
        for i in range(7):
            P(f'''
            v_add_u32 v27, s{sT0}, v{L}
            v_add_u32 v27, {64*i}, v27
            v_mul_u32_u24 v28, 4682, v27
            v_lshrrev_b32 v28, 16, v28
            v_mul_u32_u24 v29, 14, v28
            v_sub_u32 v27, v27, v29
            v_and_b32 v29, 0x33, v28
            v_bfe_u32 v30, v28, 2, 1
            v_lshl_or_b32 v29, v30, 3, v29
            v_bfe_u32 v30, v28, 3, 1
            v_lshl_or_b32 v29, v30, 2, v29
            v_mul_u32_u24 v29, 7168, v29
            v_lshl_add_u32 v29, v27, 4, v29
            v_add_u32 v29, s{sT1}, v29
            v_subrev_u32 v{vDG+i}, {1024*(i & 3)}, v29
            ''')
        P(f'''
        v_and_b32 v27, 15, v{L}
        v_lshrrev_b32 v28, 4, v{L}
        v_lshrrev_b32 v29, 1, v27
        v_xor_b32 v29, v29, v28
        s_lshl_b32 s{sT0}, s{sW}, 13
        v_lshlrev_b32 v30, 7, v27
        v_add_u32 v30, s{sT0}, v30
        v_lshl_add_u32 v{vRX}, v29, 4, v30
        v_xor_b32 v29, 4, v29
        v_lshl_add_u32 v{vRX+1}, v29, 4, v30
        v_lshrrev_b32 v29, 5, v{L}
        v_and_b32 v28, 1, v28
        v_lshrrev_b32 v30, 2, v27
        v_lshl_add_u32 v30, v28, 2, v30
        v_and_b32 v27, 3, v27
        v_lshlrev_b32 v27, 3, v27
        v_mul_u32_u24 v31, 3072, v29
        v_lshl_add_u32 v31, v30, 6, v31
        v_add_u32 v31, v31, v27
        v_add_u32 v31, {LQ}, v31
        v_lshl_add_u32 v{vRQ}, v28, 5, v31
        v_xor_b32 v28, 1, v28
        v_lshl_add_u32 v{vRQ+1}, v28, 5, v31
        v_lshl_add_u32 v30, v29, 4, v30
        v_mul_u32_u24 v30, 224, v30
        v_add_u32 v30, v30, v27
        v_add_u32 v{vRG}, {LG}, v30
        ''')
        self.mksrd(rWO, KA + 4, 1024 * 1024 * 2)
        self.mksrd(rWD, KA + 12, 3584 * 1024 * 2)
        self.mksrd(rGW, KA + 14, 2048)
        self.mksrd(rOUT, KA + 16, 2048 * 1024 * 2)
        self.mksrd(rDBG, KA + 18, 256)
        self.mksrd(rWS, KA + 20, WS_SIZE)
        P(f'''
        s_lshl_b32 s{sA}, s{sIDX}, 7
        s_add_u32 s{sA}, s{sA}, {WS_FLAG}
        s_lshl_b32 s{sT0}, s{sRB}, 8
        s_lshl_b32 s{sT1}, s{sCB}, 3
        s_add_u32 s{sT0}, s{sT0}, s{sT1}
        s_lshl_b32 s{sT1}, s{sW}, 1
        s_add_u32 s{sT0}, s{sT0}, s{sT1}
        s_lshl_b32 s{sGR}, s{sT0}, 11
        ''')
        if c.zero_first:
            for i in range(112): P(f'v_accvgpr_write_b32 a{i}, 0')
            for i in range(48, 256): P(f'v_mov_b32 v{i}, 0')
        for x in lateg: P.add(x)
        self.p1_dma_advance()
        self.signal(0, tag='rst', reg=31)
        if not c.zero_first:
            for i in range(112): P(f'v_accvgpr_write_b32 a{i}, 0')
            for i in range(48, 256): P(f'v_mov_b32 v{i}, 0')
        self.ts('issued')

    def pf_ins(self):
        return f'buffer_load_dword v{vPFD}, v{vPFA}, {srd(rPF)}, s{sKP} offen'

    def p1_dma_list(self):
        L = []
        def m0(i): L.append(Ins(f's_add_u32 m0, s{sBUF}, s{sM[i]}'))
        def d(v, r, s, o): L.append(Ins(f'buffer_load_dwordx4 v{v}, {srd(r)}, s{s} offen offset:{o} lds', tag='D'))
        m0(0)
        for i in range(4): d(vDX + i, rX, sKX, 1024 * i)
        m0(2)
        for i in range(3): d(vDQ + i, rQ, sKQ, 1024 * i)
        m0(3)
        for i in range(4): d(vDG + i, rG, sKG, 1024 * i)
        m0(4)
        for i in range(4, 7): d(vDG + i, rG, sKG, 1024 * (i - 4))
        m0(1)
        for i in range(4, 8): d(vDX + i, rX, sKX, 1024 * (i - 4))
        return L

    def p1_adv_list(self):
        return [f's_add_u32 s{sKX}, s{sKX}, 128', f's_add_u32 s{sKQ}, s{sKQ}, {64*6144}',
                f's_add_u32 s{sKG}, s{sKG}, {64*7168}', f's_xor_b32 s{sBUF}, s{sBUF}, {LBUF}']
    def p1_dma_advance(self):
        for x in self.p1_adv_list(): self.P(x)

    @staticmethod
    def w_reads(F):
        ks, nt = (F % 40) // 20, F % 20
        slot = aWR + 4 * (F % 8)
        out = []
        for e in range(2):
            if nt < 6: a, off = vRQ + (nt & 1), ks * 6144 + (nt >> 1) * 1024 + e * 512
            elif nt < 13: a, off = vRG, ks * 7168 + e * 1792 + (nt - 6) * 32
            else: a, off = vRG, 14336 + ks * 7168 + e * 1792 + (nt - 13) * 32
            out.append(f'ds_read_b64_tr_b16 {ar(slot + 2*e, 2)}, v{a} offset:{off}')
        return out
    @staticmethod
    def x_read(ks, tt):
        return f'ds_read_b128 {ar(aXF + ks*16 + tt*4, 4)}, v{vRX+ks} offset:{2048*tt}'
    @staticmethod
    def p1_mfma(G, tt):
        ks, nt = G // 20, G % 20
        w = ar(aWR + 4 * (G % 8), 4); x = ar(aXF + ks * 16 + tt * 4, 4)
        a, b = (x, w) if nt in (4, 5) else (w, x)
        return f'{M16} {accs(nt, tt)}, {a}, {b}, {accs(nt, tt)}'

    def toggle_reads(self):
        return [f'v_add_u32 v{r}, s{sDLT}, v{r}' for r in (vRX, vRX + 1, vRQ, vRQ + 1, vRG)]

    def p1_groups(self, groups, fill):
        for G in groups:
            for tt in range(4):
                self.P(self.p1_mfma(G, tt))
                for x in fill.get((G, tt), []):
                    if isinstance(x, Ins): self.P.add(x)
                    else: self.P(x)

    def p1_fill(self, dma, last):
        B = self.c.bar_grp
        fill = {}
        def put(G, gap, x): fill.setdefault((G % 40, gap), []).append(x)
        late = list(range(40, B + 7 + 1))
        seq = []
        for F in late: seq += self.w_reads(F)
        pos = 0
        for x in seq:
            put(B + pos // 4, pos % 4, x); pos += 1
        Gfree = B + (pos + 3) // 4
        for F in range(B + 8, 47):
            G = max(F - 7, Gfree if F - 7 < Gfree else F - 7)
            r = self.w_reads(F); put(G, 0, r[0]); put(G, 1, r[1])
        for F in range(7, 40):
            r = self.w_reads(F); put(F - 7, 0, r[0]); put(F - 7, 1, r[1])
        xg = [36, 37, 38, 39] if Gfree <= 36 else [Gfree] * 4
        for tt in range(4): put(xg[tt], 2, self.x_read(0, tt))
        for tt in range(4): put(10 + tt, 2, self.x_read(1, tt))
        tg = self.toggle_reads()
        for i, x in enumerate(tg): put(B - 1, min(i, 3), x)
        put(B - 1, 3, f's_sub_u32 s{sDLT}, 0, s{sDLT}')
        if dma:
            L = self.p1_dma_list()
            G = Gfree
            pend = None
            for x in L:
                if x.op == 's_add_u32': pend = x; continue
                if pend is not None: put(G, 1 if (G % 40) in xg else 2, pend); pend = None
                put(G, 3, x); G += 1
            put(G, 3, Ins(self.pf_ins(), tag='pf')); G += 1
            for i, x in enumerate(self.p1_adv_list() + [f's_add_u32 s{sKP}, s{sKP}, s{sPS}']):
                put(G + i, 2, x)
        return fill

    def p1_main(self):
        P, c = self.P, self.c
        B = c.bar_grp
        P.seg('p1_head0'); self.main.append('p1_head0')
        fill = self.p1_fill(True, False)
        P.need('D', 'rst')
        P('s_barrier')
        self.ts()
        self.signal(1, ins=f'buffer_atomic_add v31, off, {srd(rDBG)}, 0 offset:252 sc1', reg=31)
        P(f's_mov_b32 s{sCNT}, 15')
        f0 = self.p1_fill(True, False)
        for G in range(B, 40):
            for tt in range(4):
                for x in f0.get((G, tt), []):
                    if isinstance(x, Ins): P.add(x)
                    else: P(x)
        P('s_branch L_p1_mid')
        P.seg('p1_A')
        P('.p2align 6')
        P('L_p1_top:')
        P.need('D')
        P('s_waitcnt lgkmcnt(0)')
        P('s_barrier')
        self.p1_groups(range(B, 40), fill)
        P.seg('p1_B')
        P('L_p1_mid:')
        fill.setdefault((B - 2, 2), []).append(f's_sub_u32 s{sCNT}, s{sCNT}, 1')
        fill.setdefault((B - 1, 3), []).append(f's_cmp_lg_u32 s{sCNT}, 0')
        self.p1_groups(range(0, B), fill)
        P('s_cbranch_scc1 L_p1_top')
        self.main += ['p1_B', 'p1_A', 'p1_B', 'p1_A', 'p1_B']
        P.seg('p1_last'); self.main.append('p1_last')
        fl = self.p1_fill(False, True)
        P.need('D')
        P('s_waitcnt lgkmcnt(0)')
        P('s_barrier')
        self.p1_groups(range(B, 40), fl)
        fl.setdefault((2, 3), []).append(f'v_lshlrev_b32 v21, 5, v{vLANE}')
        fl.setdefault((3, 3), []).append(Ins(f'buffer_load_dword v5, off, {srd(rDBG)}, 0 offset:252 sc1', tag='ann'))
        GX, GW = 32, 6
        for i, x in enumerate([f'buffer_load_dwordx4 {vr(GW,4)}, v21, {srd(rGW)}, 0 offen',
                               f'buffer_load_dwordx4 {vr(GW+4,4)}, v21, {srd(rGW)}, 0 offen offset:16',
                               f'buffer_load_dwordx4 {vr(GX,4)}, v21, {srd(rX)}, s{sGR} offen',
                               f'buffer_load_dwordx4 {vr(GX+4,4)}, v21, {srd(rX)}, s{sGR} offen offset:16',
                               f'buffer_load_dwordx4 {vr(GX+8,4)}, v21, {srd(rX)}, s{sGR} offen offset:2048',
                               f'buffer_load_dwordx4 {vr(GX+12,4)}, v21, {srd(rX)}, s{sGR} offen offset:2064']):
            fl.setdefault((4 + i, 3), []).append(x)
        for k in list(fl.keys()):
            if k[0] == B - 1: fl[k] = [x for x in fl[k] if 'ds_read' in (x.text if isinstance(x, Ins) else x)]
        self.p1_groups(range(0, B), fl)
        self.p1_groups(range(B, 40), {})
        self.ts()

    def rd(self, nt, tt, tmp):
        f, b = acc(nt, tt)
        if f == 'v': return b
        for j in range(4): self.P(f'v_accvgpr_read_b32 v{tmp+j}, a{b+j}')
        return tmp

    def p1_epilogue(self):
        P, c = self.P, self.c
        L = vLANE
        P.seg('epi'); self.main.append('epi')
        vKA, vVA = 2, 3
        T = 14
        P(f'''
        v_lshrrev_b32 v14, 4, v{L}
        v_and_b32 v15, 1, v14
        v_lshlrev_b32 v15, 10, v15
        v_lshrrev_b32 v16, 1, v14
        v_lshl_or_b32 v15, v16, 9, v15
        v_bfe_u32 v16, v{L}, 3, 1
        v_lshl_or_b32 v15, v16, 8, v15
        v_and_b32 v16, 7, v{L}
        v_lshl_or_b32 v15, v16, 4, v15
        s_lshl_b32 s{sT0}, s{sW}, 13
        v_add_u32 v{vKA}, s{sT0}, v15
        v_lshrrev_b32 v15, 1, v14
        v_lshlrev_b32 v15, 10, v15
        v_and_b32 v16, 1, v14
        v_lshl_or_b32 v15, v16, 9, v15
        v_and_b32 v16, 15, v{L}
        v_lshl_or_b32 v15, v16, 4, v15
        v_add_u32 v{vVA}, s{sT0}, v15
        v_lshlrev_b32 v{vLN16}, 4, v{L}
        s_lshl_b32 s{sB}, s{sCB}, 18
        s_lshl_b32 s{sT0}, s{sRB}, 15
        s_add_u32 s{sB}, s{sB}, s{sT0}
        s_add_u32 s{sC}, s{sB}, 4096
        ''')
        for tt in range(4):
            d = T + 8 + 4 * (tt & 1)
            for u in range(2):
                b = self.rd(2 + u, tt, T + 4 * u)
                P(f'v_cvt_pk_bf16_f32 v{d+2*u}, v{b}, v{b+1}')
                P(f'v_cvt_pk_bf16_f32 v{d+2*u+1}, v{b+2}, v{b+3}')
            P(f'buffer_store_dwordx4 {vr(d,4)}, v{vKA}, {srd(rWS)}, s{sB if tt < 2 else sC} offen offset:{128*(tt&1)} sc1', tag='kv')
            P(f'ds_write_b128 v{vKA}, {vr(d,4)} offset:{4096*(tt>>1) + 128*(tt&1)}', tag='kvl')
        for qb in range(2):
            for dt in range(2):
                d = T + 8 + 4 * dt
                for a in range(2):
                    b = self.rd(4 + dt, 2 * qb + a, T + 4 * a)
                    P(f'v_cvt_pk_bf16_f32 v{d+2*a}, v{b}, v{b+1}')
                    P(f'v_cvt_pk_bf16_f32 v{d+2*a+1}, v{b+2}, v{b+3}')
                P(f'buffer_store_dwordx4 {vr(d,4)}, v{vVA}, {srd(rWS)}, s{sB if qb == 0 else sC} offen offset:{2048+256*dt} sc1', tag='kv')
                P(f'ds_write_b128 v{vVA}, {vr(d,4)} offset:{4096*qb + 2048 + 256*dt}', tag='kvl')
        GX, GW = 32, 6
        P('v_mov_b32 v14, 0')
        P('v_mov_b32 v15, 0')
        for i in range(8):
            P(f'v_dot2_f32_bf16 v14, v{GX+i}, v{GW+i}, v14')
            P(f'v_dot2_f32_bf16 v15, v{GX+8+i}, v{GW+i}, v15')
        P('s_nop 2')
        for m in ('row_shr:1 row_mask:0xf', 'row_shr:2 row_mask:0xf', 'row_shr:4 row_mask:0xf', 'row_shr:8 row_mask:0xf',
                  'row_bcast:15 row_mask:0xa', 'row_bcast:31 row_mask:0xc'):
            P(f'v_add_f32 v14, v14, v14 {m} bank_mask:0xf bound_ctrl:1')
            P(f'v_add_f32 v15, v15, v15 {m} bank_mask:0xf bound_ctrl:1')
        nl2e = hex(f2u(-math.log2(math.e)))
        P(f"""
        v_cvt_pk_bf16_f32 v14, v14, v15
        v_and_b32 v15, 0xffff0000, v14
        v_lshlrev_b32 v14, 16, v14
        v_mul_f32 v14, {nl2e}, v14
        v_mul_f32 v15, {nl2e}, v15
        v_exp_f32 v14, v14
        v_exp_f32 v15, v15
        v_add_f32 v14, 1.0, v14
        v_add_f32 v15, 1.0, v15
        v_rcp_f32 v14, v14
        v_rcp_f32 v15, v15
        s_lshl_b32 s{sT0}, s{sW}, 3
        s_add_u32 s{sT0}, s{sT0}, s{sA}
        v_cvt_pk_bf16_f32 v14, v14, v15
        v_and_b32 v15, 0xffff0000, v14
        v_lshlrev_b32 v14, 16, v14
        s_mov_b32 exec_lo, 0
        s_mov_b32 exec_hi, 0x80000000
        buffer_store_dwordx2 v[14:15], off, {srd(rWS)}, s{sT0} offset:32 sc1
        s_mov_b64 exec, -1
        """, tag='g')
        qs = (32 ** -0.5) * math.log2(math.e)
        P(f's_mov_b32 s{sT0}, {hex(f2u(qs))}')
        for tt in range(4):
            d = vQF + 4 * tt
            for u in range(2):
                b = self.rd(u, tt, 16 + 4 * u)
                for j in range(4): P(f'v_mul_f32 v{b+j}, s{sT0}, v{b+j}')
                P(f'v_cvt_pk_bf16_f32 v{d+2*u}, v{b}, v{b+1}')
                P(f'v_cvt_pk_bf16_f32 v{d+2*u+1}, v{b+2}, v{b+3}')
        for qb in range(2):
            for i in range(4): P(f'v_permlane16_swap_b32 v{vQF+8*qb+i}, v{vQF+8*qb+4+i}')
        self.spin_check(lambda: P(f'buffer_load_dword v5, off, {srd(rDBG)}, 0 offset:252 sc1'),
                        'v_cmp_ne_u32 vcc, 0x100, v5')
        k0 = -2.0 * math.sqrt(2.0 / math.pi) * math.log2(math.e)
        k1 = k0 * 0.044715
        vK0 = 6
        P(f"""
        s_mov_b32 s{sK}, {hex(f2u(k1))}
        s_mov_b32 s{sK+1}, {hex(f2u(k1))}
        v_mov_b32 v{vK0}, {hex(f2u(k0))}
        v_mov_b32 v{vK0+1}, {hex(f2u(k0))}
        s_lshl_b32 s{sT0}, s{sRB}, 3
        s_lshl_b32 s{sT1}, s{sW}, 1
        s_add_u32 s{sT0}, s{sT0}, s{sT1}
        s_mul_i32 s{sT0}, s{sT0}, 224
        s_mul_i32 s{sT1}, s{sCB}, 7
        s_add_u32 s{sT0}, s{sT0}, s{sT1}
        s_lshl_b32 s{sT0}, s{sT0}, 10
        s_add_u32 s{sB}, s{sT0}, {WS_H}
        s_add_u32 s{sC}, s{sB}, 4096
        s_add_u32 s{sD}, s{sB}, {224*1024}
        s_add_u32 s{sE}, s{sD}, 4096
        """)
        self.hstores = []
        order = [(ft, qb) for ft in (5, 4, 3, 2, 1, 0, 6) for qb in (1, 0)]
        for n, (ft, qb) in enumerate(order):
            H = 252 - 4 * n
            tset = []
            for a in range(2):
                tt = 2 * qb + a
                x = acc(6 + ft, tt)[1]
                u = self.rd(13 + ft, tt, 16 + 4 * a)
                tset.append((x, u, 8 + 4 * a))
            pr = lambda b: f'v[{b}:{b+1}]'
            ops = []
            for (x, u, t) in tset:
                for h in (0, 2): ops.append((x + h, u + h, t + h))
            for (x, u, t) in ops: P(f'v_pk_mul_f32 {pr(t)}, {pr(x)}, {pr(x)}')
            for (x, u, t) in ops: P(f'v_pk_fma_f32 {pr(t)}, {pr(t)}, s[{sK}:{sK+1}], {pr(vK0)}')
            for (x, u, t) in ops: P(f'v_pk_mul_f32 {pr(t)}, {pr(t)}, {pr(x)}')
            for (x, u, t) in ops: P(f'v_exp_f32 v{t}, v{t}'); P(f'v_exp_f32 v{t+1}, v{t+1}')
            for (x, u, t) in ops: P(f'v_pk_mul_f32 {pr(x)}, {pr(x)}, {pr(u)}')
            for (x, u, t) in ops: P(f'v_pk_add_f32 {pr(t)}, {pr(t)}, 1.0 op_sel_hi:[1,0]')
            for (x, u, t) in ops: P(f'v_rcp_f32 v{t}, v{t}'); P(f'v_rcp_f32 v{t+1}, v{t+1}')
            for (x, u, t) in ops: P(f'v_pk_mul_f32 {pr(x)}, {pr(x)}, {pr(t)}')
            for i, (x, u, t) in enumerate(ops): P(f'v_cvt_pk_bf16_f32 v{H+i}, v{x}, v{x+1}')
            P(f'v_permlane16_swap_b32 v{H}, v{H+2}')
            P(f'v_permlane16_swap_b32 v{H+1}, v{H+3}')
            so = [[sB, sC], [sD, sE]][qb][ft >> 2]
            self.hstores.append(f'buffer_store_dwordx4 {vr(H,4)}, v{vLN16}, {srd(rWS)}, s{so} offen offset:{1024*(ft&3)} sc1')
            if n == c.kv_sig_at:
                P.need('kv', 'g', 'kvl')
                P('s_barrier')
                self.signal(1)
            if n == c.kv_poll_at:
                P(f"""
                v_and_b32 v{vPA}, 7, v{L}
                s_lshl_b32 s{sT0}, s{sCB}, 3
                v_add_u32 v{vPA}, s{sT0}, v{vPA}
                v_lshlrev_b32 v{vPA}, 7, v{vPA}
                s_mov_b32 s{sHK}, {WS_FLAG}
                """)
                P(self.poll())
        self.ts()

    def poll(self):
        return f'buffer_load_dword v{vPD}, v{vPA}, {srd(rWS)}, s{sHK} offen sc1'
    def poll_check(self, level):
        self.spin_check(lambda: self.P(self.poll()), f'v_cmp_gt_u32 vcc, {level}, v{vPD}')

    def att_tile(self, t, first, last, ex):
        P = self.P
        kb, qt = t >> 1, t & 1
        S, Sn = vS[t & 1], vS[(t + 1) & 1]
        Pc, Pp = vP[t & 1], vP[(t - 1) & 1]
        kn, qn = ((t + 1) >> 1) & 1, (t + 1) & 1
        kp, qp = ((t - 1) >> 1) & 1, (t - 1) & 1
        def X(k):
            for x in ex.get((t, k), []):
                if callable(x): x()
                elif isinstance(x, Ins): P.add(x)
                else: P(x)
        e = lambda i: P(f'v_exp_f32 v{S+i}, v{S+i}')
        cv = lambda i: P(f'v_cvt_pk_bf16_f32 v{Pc+i}, v{S+2*i}, v{S+2*i+1}')
        doqk = not (last and t == 15)
        doprev = not (first and t == 0)
        dord = not (last and kb == 7)
        nb = (kb + 1) & 1
        off = ((kb + 1) & 7) * 4096 + 2048 * qt
        dst = (vK if qt == 0 else vV)[nb]
        X('pre')
        if doqk: P(f'{M32} {vr(Sn,16)}, {vr(vK[kn],4)}, {vr(vQF+8*qn,4)}, {vr(vNM[qn],16)}')
        if dord: P(f'ds_read_b128 {vr(dst,4)}, v{vKVR} offset:{off}')
        X('a'); e(0); e(1); e(2)
        if doprev: P(f'{M32} {vr(vO[qp],16)}, {vr(vV[kp]+4,4)}, {vr(Pp+4,4)}, {vr(vO[qp],16)}')
        if dord: P(f'ds_read_b128 {vr(dst+4,4)}, v{vKVR} offset:{off+1024}')
        X('b'); cv(0); e(3); e(4); cv(1)
        if doprev: P(f'{M16} {vr(vL[qp],4)}, {vr(vONE,4)}, {vr(Pp+4,4)}, {vr(vL[qp],4)}')
        X('c'); e(5)
        if doqk: P(f'{M32} {vr(Sn,16)}, {vr(vK[kn]+4,4)}, {vr(vQF+8*qn+4,4)}, {vr(Sn,16)}')
        X('d'); e(6); cv(2); e(7); e(8); cv(3); e(9); e(10)
        P(f'{M32} {vr(vO[qt],16)}, {vr(vV[kb&1],4)}, {vr(Pc,4)}, {vr(vO[qt],16)}')
        X('e'); cv(4); e(11); e(12); cv(5)
        P(f'{M16} {vr(vL[qt],4)}, {vr(vONE,4)}, {vr(Pc,4)}, {vr(vL[qt],4)}')
        X('f'); e(13); e(14); e(15); cv(6); cv(7)

    def att_body(self, first, last, ex, needs=()):
        P = self.P
        put = lambda t, k, x: ex.setdefault((t, k), []).append(x)
        if not last:
            put(0, 'c', f's_add_u32 s{sKVN}, s{sKVN}, 1')
            put(0, 'd', f's_and_b32 s{sKVN}, s{sKVN}, 7')
            put(0, 'e', f's_lshl_b32 s{sKVO}, s{sKVN}, 15')
            put(0, 'f', f's_add_u32 s{sKVO}, s{sKVO}, s{sKVB}')
            put(1, 'a', f's_xor_b32 s{sSLOT}, s{sSLOT}, 32768')
            put(1, 'c', f's_mov_b32 m0, s{sSLOT}')
            put(2, 'c', f's_add_u32 s{sKVO2}, s{sKVO}, 4096')
            put(3, 'c', f's_add_u32 m0, s{sSLOT}, 4096')
            for i in range(8):
                put(1 + i // 2, 'de'[i & 1], Ins(f'buffer_load_dwordx4 v{vKVD}, {srd(rWS)}, s{sKVO if i < 4 else sKVO2} offen offset:{1024*(i&3)} sc1 lds', tag='KV'))
            put(13, 'd', f'v_xor_b32 v{vKVR}, 32768, v{vKVR}')
            def bar():
                P.need('KV', *needs); P('s_waitcnt lgkmcnt(0)'); P('s_barrier')
            ex.setdefault((14, 'pre'), []).insert(0, bar)
        for t in range(16): self.att_tile(t, first, last, ex)

    def wd_dma(self, i):
        return Ins(f'buffer_load_dwordx4 v{vWD+(i&3)}, {srd(rWD)}, s{sWD if i < 4 else sWD2} offen offset:{1024*(i&3)} lds', tag='W')
    def wo_dma(self, i):
        return Ins(f'buffer_load_dwordx4 v{vWO+(i&3)}, {srd(rWO)}, s{sWD if i < 4 else sWD2} offen offset:{1024*(i&3)} lds', tag='W')
    def b_load(self, n):
        return Ins(f'buffer_load_dwordx4 {ar(4*(n%56),4)}, v{vLN16}, {srd(rWS)}, s{sHL} offen offset:{1024*(n&3)} sc1')

    def attention(self):
        P, c = self.P, self.c
        L = vLANE
        P.seg('att_pro'); self.main.append('att_pro')
        P(f"""
        v_mov_b32 v{vKVR}, v{vLN16}
        ds_read_b128 {vr(vK[0],4)}, v{vLN16} offset:0
        ds_read_b128 {vr(vK[0]+4,4)}, v{vLN16} offset:1024
        ds_read_b128 {vr(vV[0],4)}, v{vLN16} offset:2048
        ds_read_b128 {vr(vV[0]+4,4)}, v{vLN16} offset:3072
        s_lshl_b32 s{sSLOT}, s{sW}, 13
        v_add_u32 v{vKVD}, s{sSLOT}, v{vLN16}
        s_lshl_b32 s{sKVB}, s{sCB}, 18
        s_mov_b32 s{sKVN}, s{sRB}
        v_and_b32 v12, 3, v{L}
        v_lshrrev_b32 v13, 2, v{L}
        v_lshrrev_b32 v14, 4, v{L}
        v_xor_b32 v13, v13, v14
        v_and_b32 v13, 1, v13
        v_or_b32 v12, v12, v13
        v_cmp_eq_u32 vcc, 0, v12
        v_mov_b32 v13, 0x3f803f80
        """)
        for q in range(2):
            P(f'{M32} {vr(vS[q],16)}, {vr(vK[0],4)}, {vr(vQF+8*q,4)}, 0')
            P(f'{M32} {vr(vS[q],16)}, {vr(vK[0]+4,4)}, {vr(vQF+8*q+4,4)}, {vr(vS[q],16)}')
        for i in range(4): P(f'v_cndmask_b32 v{vONE+i}, 0, v13, vcc')
        P(f"""
        s_lshl_b32 s{sT0}, s{sW}, 5
        v_add_u32 v12, s{sT0}, v14
        v_lshlrev_b32 v12, 11, v12
        v_and_b32 v13, 15, v{L}
        v_lshlrev_b32 v14, 2, v14
        v_xor_b32 v13, v13, v14
        v_lshl_add_u32 v{vWD}, v13, 4, v12
        s_mul_i32 s{sWD}, s{sKH}, {1792*2048}
        s_lshl_b32 s{sT0}, s{sNI}, 8
        s_add_u32 s{sWD}, s{sWD}, s{sT0}
        s_add_u32 s{sWD2}, s{sWD}, {16*2048}
        s_add_u32 s{sWM}, s{sSLOT}, 65536
        s_lshl_b32 s{sT0}, s{sMI}, 2
        s_add_u32 s{sT0}, s{sT0}, s{sW}
        s_mul_i32 s{sHL}, s{sT0}, 224
        s_mul_i32 s{sT1}, s{sKH}, 112
        s_add_u32 s{sHL}, s{sHL}, s{sT1}
        s_lshl_b32 s{sHL}, s{sHL}, 10
        s_add_u32 s{sHL}, s{sHL}, {WS_H}
        """)
        for i in range(1, 4): P(f'v_add_u32 v{vWD+i}, {i*(8192-1024)}, v{vWD}')
        for q in range(2):
            for i in range(16): P(f'v_mov_b32 v{vO[q]+i}, 0')
            for i in range(4): P(f'v_mov_b32 v{vL[q]+i}, 0')
        for lvl in range(8):
            for q in range(2):
                S = vS[q]
                if lvl < 7: P(f'v_max3_f32 v{12+q}, v{S+2*lvl+1}, v{S+2*lvl+2}, v{S if lvl == 0 else 12+q}')
                else: P(f'v_max_f32 v{12+q}, v{S+15}, v{12+q}')
        for q in range(2): P(f'v_mov_b32 v{14+q}, v{12+q}')
        for q in range(2): P(f'v_permlane32_swap_b32 v{12+q}, v{14+q}')
        for q in range(2): P(f'v_max_f32 v{12+q}, v{12+q}, v{14+q}')
        for q in range(2):
            for i in range(16): P(f'v_sub_f32 v{vNM[q]+i}, 0, v{12+q}')
        P(f'{M32} {vr(vS[0],16)}, {vr(vK[0],4)}, {vr(vQF,4)}, {vr(vNM[0],16)}')
        P(f'{M32} {vr(vS[0],16)}, {vr(vK[0]+4,4)}, {vr(vQF+4,4)}, {vr(vS[0],16)}')
        hs = [Ins(x, tag='h') for x in self.hstores]
        P.seg('att0'); self.main.append('att0')
        ex = {(1, 'pre'): [lambda: self.poll_check(1)]}
        for i in range(7): ex.setdefault((6 + i, 'd'), []).append(hs[i])
        self.att_body(True, False, ex)
        P.seg('att1'); self.main.append('att1')
        ex = {(14, 'pre'): [lambda: self.signal(3)]}
        for i in range(7): ex.setdefault((5 + i, 'd'), []).append(hs[7 + i])
        ex.setdefault((15, 'f'), []).append(f's_mov_b32 s{sIT}, 3')
        self.att_body(False, False, ex, needs=('h',))
        P.seg('att2'); self.main += ['att2', 'att2', 'att2']
        P('L_att2:')
        ex = {(6, 'c'): [f's_mov_b32 m0, s{sWM}'], (8, 'c'): [f's_add_u32 m0, s{sWM}, 4096'],
              (10, 'c'): [f's_add_u32 s{sWD}, s{sWD}, {128*2048}'], (10, 'd'): [f's_add_u32 s{sWD2}, s{sWD2}, {128*2048}'],
              (10, 'e'): [f's_add_u32 s{sWM}, s{sWM}, 32768'], (15, 'c'): [f's_sub_u32 s{sIT}, s{sIT}, 1'],
              (15, 'f'): [f's_cmp_lg_u32 s{sIT}, 0']}
        for i in range(8): ex.setdefault((6 + i // 2, 'de'[i & 1]), []).append(self.wd_dma(i))
        self.att_body(False, False, ex)
        P('s_cbranch_scc1 L_att2')
        P.seg('att5'); self.main.append('att5')
        P(f"""
        v_and_b32 v{vPA}, 15, v{L}
        s_lshl_b32 s{sT0}, s{sKH}, 4
        v_add_u32 v{vPA}, s{sT0}, v{vPA}
        v_lshlrev_b32 v{vPA}, 3, v{vPA}
        s_lshr_b32 s{sT0}, s{sMI}, 1
        v_add_u32 v{vPA}, s{sT0}, v{vPA}
        v_lshlrev_b32 v{vPA}, 7, v{vPA}
        """)
        P(self.poll())
        n = 0
        for it in (5, 6, 7):
            if it > 5:
                P.seg(f'att{it}'); self.main.append(f'att{it}')
            ex = {}
            if it == 5: ex[(5, 'pre')] = [lambda: self.poll_check(3)]
            for t in range(5 if it < 7 else 0, 16):
                for k in 'de':
                    if n < 56:
                        ex.setdefault((t, k), []).append(self.b_load(n))
                        if n & 3 == 3: ex.setdefault((t, 'f'), []).append(f's_add_u32 s{sHL}, s{sHL}, 4096')
                        n += 1
            self.att_body(False, it == 7, ex, needs=('W',))
        assert n == 56
        P(f'{M32} {vr(vO[1],16)}, {vr(vV[1]+4,4)}, {vr(vP[1]+4,4)}, {vr(vO[1],16)}')
        P(f'{M16} {vr(vL[1],4)}, {vr(vONE,4)}, {vr(vP[1]+4,4)}, {vr(vL[1],4)}')
        self.ts()
        thr = hex(f2u(2.0 ** 30 if not c.force_fallback else 0.0))
        P(f"""
        s_lshl_b32 s{sT0}, s{sRB}, 3
        s_lshl_b32 s{sT1}, s{sW}, 1
        s_add_u32 s{sT0}, s{sT0}, s{sT1}
        s_lshl_b32 s{sT0}, s{sT0}, 5
        s_add_u32 s{sT0}, s{sT0}, s{sCB}
        s_lshl_b32 s{sT0}, s{sT0}, 11
        s_add_u32 s{sB}, s{sT0}, {WS_O}
        s_add_u32 s{sC}, s{sB}, 65536
        v_add_f32 v13, v{vL[0]}, v{vL[1]}
        v_cmp_ngt_f32 vcc, {thr}, v13
        s_cbranch_vccnz L_fallback
        """)
        self.pre_norm = list(self.main)
        P.seg('norm'); self.main.append('norm')
        P('L_norm:')
        for q in range(2): P(f'v_rcp_f32 v{12+q}, v{vL[q]}')
        for q in range(2):
            for i in range(16): P(f'v_mul_f32 v{vO[q]+i}, v{12+q}, v{vO[q]+i}')
            for i in range(8): P(f'v_cvt_pk_bf16_f32 v{vP[q]+i}, v{vO[q]+2*i}, v{vO[q]+2*i+1}')
            for cc in range(2):
                P(f'buffer_store_dwordx4 {vr(vP[q]+4*cc,4)}, v{vLN16}, {srd(rWS)}, s{sB if q == 0 else sC} offen offset:{1024*cc} sc1', tag='o')

    def fallback(self):
        P = self.P
        P.seg('fb_pro')
        P(f"""
        L_fallback:
        s_mov_b32 s{sKVO}, s{sKVB}
        s_mov_b32 s{sIT}, 64
        """)
        vM, vLL = 8, 10
        vM, vLL = 20, 22
        for q in range(2):
            P(f'v_mov_b32 v{vM+q}, 0xff800000')
            P(f'v_mov_b32 v{vLL+q}, 0')
            for i in range(16): P(f'v_mov_b32 v{vO[q]+i}, 0')
        P.seg('fb_loop')
        P('L_fb_loop:')
        for i in range(2): P(f'buffer_load_dwordx4 {vr(vK[0]+4*i,4)}, v{vLN16}, {srd(rWS)}, s{sKVO} offen offset:{1024*i} sc1')
        for i in range(2): P(f'buffer_load_dwordx4 {vr(vV[0]+4*i,4)}, v{vLN16}, {srd(rWS)}, s{sKVO} offen offset:{2048+1024*i} sc1')
        for q in range(2):
            S = vS[q]
            P(f'{M32} {vr(S,16)}, {vr(vK[0],4)}, {vr(vQF+8*q,4)}, 0')
            P(f'{M32} {vr(S,16)}, {vr(vK[0]+4,4)}, {vr(vQF+8*q+4,4)}, {vr(S,16)}')
        for q in range(2):
            S = vS[q]
            P(f'v_max3_f32 v12, v{S}, v{S+1}, v{vM+q}')
            for i in range(1, 8): P(f'v_max3_f32 v12, v{S+2*i}, v{S+2*i+1}, v12')
            P(f"""
            v_mov_b32 v13, v12
            v_permlane32_swap_b32 v12, v13
            v_max_f32 v12, v12, v13
            v_sub_f32 v13, v{vM+q}, v12
            v_exp_f32 v13, v13
            v_mov_b32 v{vM+q}, v12
            v_mul_f32 v{vLL+q}, v13, v{vLL+q}
            """)
            for i in range(16): P(f'v_mul_f32 v{vO[q]+i}, v13, v{vO[q]+i}')
            for i in range(16): P(f'v_sub_f32 v{S+i}, v{S+i}, v12')
            for i in range(16): P(f'v_exp_f32 v{S+i}, v{S+i}')
            for i in range(16): P(f'v_add_f32 v{vLL+q}, v{vLL+q}, v{S+i}')
            for i in range(8): P(f'v_cvt_pk_bf16_f32 v{vP[q]+i}, v{S+2*i}, v{S+2*i+1}')
            for m in range(2): P(f'{M32} {vr(vO[q],16)}, {vr(vV[0]+4*m,4)}, {vr(vP[q]+4*m,4)}, {vr(vO[q],16)}')
        P(f"""
        s_add_u32 s{sKVO}, s{sKVO}, 4096
        s_sub_u32 s{sIT}, s{sIT}, 1
        s_cmp_lg_u32 s{sIT}, 0
        s_cbranch_scc1 L_fb_loop
        """)
        P.seg('fb_end')
        for q in range(2):
            P(f"""
            v_mov_b32 v13, v{vLL+q}
            v_permlane32_swap_b32 v{vLL+q}, v13
            v_add_f32 v{vL[q]}, v{vLL+q}, v13
            """)
        P('s_branch L_norm')

    def stage34(self):
        P, c = self.P, self.c
        L = vLANE
        P.seg('s3_pro'); self.main.append('s3_pro')
        P('s_waitcnt lgkmcnt(0)')
        P('s_barrier')
        P(f's_lshl_b32 s{sWM}, s{sW}, 13')
        for s in (3, 4):
            for i in range(8):
                if i in (0, 4): P(f's_add_u32 m0, s{sWM}, {(s-3)*32768 + 1024*i}')
                x = self.wd_dma(i); x.tag = f'W{s}'; P.add(x)
            P(f's_add_u32 s{sWD}, s{sWD}, {128*2048}')
            P(f's_add_u32 s{sWD2}, s{sWD2}, {128*2048}')
        P(f"""
        v_lshrrev_b32 v12, 5, v{L}
        v_bfe_u32 v13, v{L}, 2, 2
        v_lshl_add_u32 v12, v12, 3, v13
        v_bfe_u32 v14, v{L}, 4, 1
        v_lshlrev_b32 v14, 5, v14
        v_and_b32 v15, 3, v{L}
        v_lshl_add_u32 v14, v15, 3, v14
        v_lshl_add_u32 v15, v12, 8, v14
        v_add_u32 v15, 65536, v15
        s_lshl_b32 s{sT0}, s{sKH}, 1
        s_xor_b32 s{sT0}, s{sT0}, 2
        v_xor_b32 v16, s{sT0}, v13
        """)
        for n in range(4):
            P(f'v_xor_b32 v17, {n}, v16')
            P(f'v_lshl_add_u32 v{vR3+n}, v17, 6, v15')
        P(f"""
        v_lshl_add_u32 v15, v12, 7, v14
        v_lshrrev_b32 v13, 1, v13
        v_lshl_add_u32 v{vR4}, v13, 6, v15
        v_xor_b32 v13, 1, v13
        v_lshl_add_u32 v{vR4+1}, v13, 6, v15
        v_add_u32 v{vR4}, 32768, v{vR4}
        v_add_u32 v{vR4+1}, 32768, v{vR4+1}
        v_lshrrev_b32 v12, 5, v{L}
        v_bfe_u32 v13, v{L}, 3, 2
        v_lshl_add_u32 v12, v12, 3, v13
        s_lshl_b32 s{sT0}, s{sW}, 6
        v_add_u32 v12, s{sT0}, v12
        v_lshlrev_b32 v12, 11, v12
        v_bfe_u32 v13, v{L}, 4, 1
        v_lshlrev_b32 v13, 2, v13
        v_and_b32 v14, 7, v{L}
        v_xor_b32 v13, v13, v14
        v_lshl_add_u32 v{vWO}, v13, 4, v12
        """)
        for i in range(1, 4): P(f'v_add_u32 v{vWO+i}, {(16*(i>>1) + 4*(i&1))*2048 - 1024*i}, v{vWO}')
        P(f"""
        v_and_b32 v{vPA}, 31, v{L}
        v_lshlrev_b32 v{vPA}, 3, v{vPA}
        s_lshr_b32 s{sT0}, s{sMI}, 1
        v_add_u32 v{vPA}, s{sT0}, v{vPA}
        v_lshlrev_b32 v{vPA}, 7, v{vPA}
        s_lshl_b32 s{sT0}, s{sMI}, 7
        s_lshl_b32 s{sT1}, s{sW}, 5
        s_add_u32 s{sT0}, s{sT0}, s{sT1}
        v_and_b32 v12, 31, v{L}
        v_add_u32 v12, s{sT0}, v12
        v_bfe_u32 v13, v12, 3, 5
        v_lshlrev_b32 v13, 3, v13
        v_lshrrev_b32 v14, 8, v12
        v_add_u32 v13, v13, v14
        v_lshlrev_b32 v13, 7, v13
        v_and_b32 v14, 7, v12
        v_lshl_add_u32 v{vGA}, v14, 2, v13
        v_lshlrev_b32 v12, 11, v12
        v_lshrrev_b32 v13, 5, v{L}
        v_lshl_add_u32 v{vOA}, v13, 4, v12
        s_lshl_b32 s{sT0}, s2, 2
        s_add_u32 s{sT0}, s{sT0}, s{sW}
        s_lshl_b32 s{sPO}, s{sT0}, 13
        s_add_u32 s{sPO}, s{sPO}, {WS_PART}
        """)
        for i in range(64): P(f'v_mov_b32 v{vA3+i}, 0')
        for i in range(32): P(f'v_mov_b32 v{vA4+i}, 0')

        NF3, NF = 14 * 32, 18 * 32
        DW, B = c.s3_dist, c.s3_bar
        def reads(F):
            s, f = F // 32, F % 32
            slot = vWR + 4 * (F % 8)
            if s < 14: a, off, es = vR3 + (f & 3), (f >> 2) * 4096, 1024
            else: a, off, es = vR4 + (f & 1), (f >> 1) * 2048, 512
            return [f'ds_read_b64_tr_b16 {vr(slot+2*e,2)}, v{a} offset:{off+e*es}' for e in range(2)]
        def step_of(F):
            return F // 4 if F < NF3 else 112 + (F - NF3) // 2
        def mfma(F):
            n = step_of(F)
            d = vA3 + 16 * (F & 3) if F < NF3 else vA4 + 16 * (F & 1)
            return f'{M32} {vr(d,16)}, {vr(vWR+4*(F%8),4)}, {ar(4*(n%56),4)}, {vr(d,16)}'
        fill = {}
        put = lambda F, x: fill.setdefault(F, []).append(x)
        pre = {}
        putp = lambda F, x: pre.setdefault(F, []).append(x)
        slot_of = lambda s: (s + 2) % 5
        for s in range(18):
            F0 = 32 * s
            for f in range(32):
                F = F0 + f
                G = F - DW
                if s > 0: G = max(G, F0 - 32 + B + f // 2)
                if G >= 0:
                    for x in reads(F): put(G, x)
            if s < 17:
                Fb = F0 + B
                def bar(s=s):
                    P.need(f'W{s+1}', *(['o'] if s == 0 else []), *(['part'] if s == c.part_sig else []))
                    P('s_waitcnt lgkmcnt(0)'); P('s_barrier')
                    if s == 0: self.signal(7)
                    if s == c.part_sig: self.signal(15)
                putp(Fb, bar)
                if s + 1 != 14:
                    d = (slot_of(s + 1) - slot_of(s)) * 32768
                    regs = [vR3 + i for i in range(4)] if s + 1 < 14 else [vR4, vR4 + 1]
                    for r in regs: put(Fb - 1, f'v_add_u32 v{r}, {d & 0xffffffff}, v{r}')
                nx = s + 5
                if nx < 18:
                    if nx == 14:
                        put(Fb, f's_lshl_b32 s{sWD}, s{sNI}, 8')
                        put(Fb, f's_lshl_b32 s{sT0}, s{sKH}, 7')
                        put(Fb, f's_add_u32 s{sWD}, s{sWD}, s{sT0}')
                        put(Fb, f's_add_u32 s{sWD2}, s{sWD}, {32*2048}')
                    for i in range(8):
                        G = Fb + 1 + 3 * i
                        if i in (0, 4): put(G - 1 if i else G, f's_add_u32 m0, s{sWM}, {slot_of(s)*32768 + 1024*i}')
                        x = self.wd_dma(i) if nx < 14 else self.wo_dma(i)
                        x.tag = f'W{nx}'
                        put(G + (1 if i == 0 else 0), x)
                    st = 128 * 2048 if nx < 14 else 256 * 2048
                    put(Fb + 24, f's_add_u32 s{sWD}, s{sWD}, {st}')
                    put(Fb + 24, f's_add_u32 s{sWD2}, s{sWD2}, {st}')
        for n in range(0, 176 - 56):
            F = 4 * n + 3 if n < 112 else NF3 + 2 * (n - 112) + 1
            m = n + 56
            if m == 112:
                put(F - 1, f's_lshl_b32 s{sT1}, s{sMI}, 2')
                put(F - 1, f's_add_u32 s{sT1}, s{sT1}, s{sW}')
                put(F - 1, f's_lshl_b32 s{sT1}, s{sT1}, 16')
                put(F - 1, f's_add_u32 s{sHL}, s{sT1}, {WS_O}')
            put(F, self.b_load(m))
            if m & 3 == 3: put(F + 1, f's_add_u32 s{sHL}, s{sHL}, 4096')
        put(32 * 4, self.poll())
        putp(32 * 7, lambda: self.poll_check(7))
        put(32 * 7 + 1, f'buffer_load_dword v{vG}, v{vGA}, {srd(rWS)}, s{sHK} offen offset:32 sc1')
        for i in range(8):
            put(NF3 + 3 + i, Ins(f'buffer_store_dwordx4 {vr(vA3+4*i,4)}, v{vLN16}, {srd(rWS)}, s{sPO if i < 4 else sT2} offen offset:{1024*(i&3)} sc1', tag='part'))
        put(NF3, f's_add_u32 s{sT2}, s{sPO}, 4096')
        put(NF3 + 12, f's_xor_b32 s{sPO}, s{sPO}, {4 << 13}')
        put(NF3 + 13, f's_xor_b32 s{sT2}, s{sT2}, {4 << 13}')
        put(NF3 + 14, f's_xor_b32 s{sT1}, s{sIDX}, 32')
        put(NF3 + 15, f's_lshl_b32 s{sT1}, s{sT1}, 7')
        put(NF3 + 16, f'v_mov_b32 v{vPA}, s{sT1}')
        put(c.part_poll, self.poll())
        for F in range(DW):
            for x in reads(F): P(x)
        for F in range(NF):
            for x in pre.get(F, []): x()
            if F == NF3: self.ts()
            P(mfma(F))
            for x in fill.get(F, []):
                if isinstance(x, Ins): P.add(x)
                else: P(x)
        self.ts()
        self.poll_check(15)
        for i in range(8):
            P(f'buffer_load_dwordx4 {vr(vPP+4*i,4)}, v{vLN16}, {srd(rWS)}, s{sPO if i < 4 else sT2} offen offset:{1024*(i&3)} sc1')
        P(f"""
        v_sub_f32 v12, 1.0, v{vG}
        v_cvt_pk_bf16_f32 v12, v12, v12
        v_and_b32 v12, 0xffff0000, v12
        s_lshl_b32 s{sT0}, s{sNI}, 8
        s_lshl_b32 s{sT1}, s{sKH}, 7
        s_add_u32 s{sT0}, s{sT0}, s{sT1}
        """)
        for i in range(32): P(f'v_mul_f32 v{vA4+i}, v{vG}, v{vA4+i}')
        for nt in range(2):
            for hh in range(2):
                r0 = 16 * nt + 8 * hh
                for i in range(8): P(f'v_add_f32 v{vPP+r0+i}, v{vPP+r0+i}, v{vA3+32+r0+i}')
                for i in range(8): P(f'v_fma_f32 v{vPP+r0+i}, v{vPP+r0+i}, v12, v{vA4+r0+i}')
                d = vWR + 4 * (2 * nt + hh)
                for i in range(4): P(f'v_cvt_pk_bf16_f32 v{d+i}, v{vPP+r0+2*i}, v{vPP+r0+2*i+1}')
                P(f'v_permlane32_swap_b32 v{d}, v{d+2}')
                P(f'v_permlane32_swap_b32 v{d+1}, v{d+3}')
                P(f'buffer_store_dwordx4 {vr(d,4)}, v{vOA}, {srd(rOUT)}, s{sT0} offen offset:{64*nt+32*hh}')

    def signal(self, val, tag=None, ins=None, reg=5):
        P = self.P
        k = len(P.segs)
        P(f'''
        s_cmp_lg_u32 s{sW}, 0
        s_cbranch_scc1 L_sig{k}
        ''')
        P.seg(f'sig{k}'); self.main.append(f'sig{k}')
        P(f'''
        s_mov_b64 exec, 1
        v_mov_b32 v{reg}, {val}
        {ins or f'buffer_store_dword v{reg}, off, {srd(rWS)}, s{sA} sc1'}
        s_mov_b64 exec, -1
        ''', tag=tag)
        P.seg(f'sig{k}e'); self.main.append(f'sig{k}e')
        P(f'L_sig{k}:')

    def spin_check(self, reload, cmp, pre=None):
        P = self.P
        k = len(P.segs)
        if pre: P(pre)
        P(f's_mov_b32 s{sT3}, 0')
        P.seg(f'spin{k}'); self.main.append(f'spin{k}')
        P(f'L_spin{k}:')
        P(cmp)
        P(f'''
        s_cbranch_vccz L_spin{k}x
        ''')
        P.seg(f'spin{k}r')
        P(f'''
        s_add_u32 s{sT3}, s{sT3}, 1
        s_cmp_gt_u32 s{sT3}, {self.c.spin_max}
        s_cbranch_scc1 L_end
        s_sleep 2
        ''')
        reload()
        P(f's_branch L_spin{k}')
        self.main += [f'spin{k}r', f'spin{k}']
        P.seg(f'spin{k}x'); self.main.append(f'spin{k}x')
        P(f'L_spin{k}x:')

    def finish(self):
        P, c = self.P, self.c
        P.seg('fin'); self.main.append('fin')
        if c.diag:
            self.ts()
            P(f'''
            s_lshl_b32 s{sT0}, s2, 2
            s_add_u32 s{sT0}, s{sT0}, s{sW}
            s_lshl_b32 s{sT0}, s{sT0}, 7
            s_add_u32 s{sT0}, s{sT0}, {WS_TS}
            v_lshlrev_b32 v2, 2, v{vLANE}
            s_mov_b64 exec, 0xffffffff
            buffer_store_dword v{vTS}, v2, {srd(rWS)}, s{sT0} offen
            ''')
        P('''
        L_end:
        s_endpgm
        ''')

    def dump_q(self):
        P = self.P
        P.seg('dumpq'); self.main.append('dumpq')
        P(f'''
        s_lshl_b32 s{sT0}, s2, 2
        s_add_u32 s{sT0}, s{sT0}, s{sW}
        s_lshl_b32 s{sT0}, s{sT0}, 12
        s_add_u32 s{sT0}, s{sT0}, {WS_DBG}
        v_lshlrev_b32 v2, 4, v{vLANE}
        ''')
        for i in range(4):
            P(f'buffer_store_dwordx4 {vr(vQF+4*i,4)}, v2, {srd(rWS)}, s{sT0} offen offset:{1024*i}')

    def build(self):
        c = self.c
        self.prologue()
        self.p1_main()
        self.p1_epilogue()
        if c.stop_after == 'p1':
            for x in self.hstores: self.P(x)
            self.dump_q()
        else:
            self.attention()
            if c.stop_after != 'att': self.stage34()
        self.finish()
        P = self.P
        if c.stop_after != 'p1':
            self.fallback()
            P.path(*(self.pre_norm + ['fb_pro', 'fb_loop', 'fb_loop', 'fb_end'] + self.main[len(self.pre_norm):]))
        P.path(*self.main)
        skip = [n for n in self.main if not ((n.startswith('sig') and not n.endswith('e')) or n.endswith('r'))]
        sk2 = [n for i, n in enumerate(skip) if not (n.startswith('spin') and i and skip[i-1] == n)]
        P.path(*sk2)
        P.finalize()
        ref = open(f'cdna_kernels/{NAME}.s.ref').read()
        head = [l for l in ref.split('\n') if l.startswith(';') and '@launch' not in l and 'Override launch' not in l and 'grid=ceil' not in l]
        out = '\n'.join(head) + f'''
; @launch grid=(256,1,1) block=(256,1,1) lds={LDS_BYTES}
.amdgcn_target "amdgcn-amd-amdhsa--gfx950"
.text
.globl {NAME}_kernel
.p2align 8
.type {NAME}_kernel,@function
{NAME}_kernel:
''' + P.text() + f'''.section .rodata,"a"
.p2align 6
.amdhsa_kernel {NAME}_kernel
  .amdhsa_next_free_vgpr 512
  .amdhsa_next_free_sgpr 102
  .amdhsa_accum_offset 256
  .amdhsa_group_segment_fixed_size 0
  .amdhsa_kernarg_size 88
  .amdhsa_user_sgpr_count 2
  .amdhsa_user_sgpr_kernarg_segment_ptr 1
  .amdhsa_system_sgpr_workgroup_id_x 1
.end_amdhsa_kernel
'''
        return out

if __name__ == '__main__':
    cfg = Cfg()
    outp = f'cdna_kernels/{NAME}.s'
    for a in sys.argv[1:]:
        if a.startswith('-o'): outp = a[2:]
        else:
            k, v = a.split('=')
            setattr(cfg, k, eval(v))
    g = Gen(cfg)
    s = g.build()
    open(outp, 'w').write(s)
    g.P.stats()
    print('wrote', outp, len(s), 'bytes')
```

```python
import sys, math, struct
from asmfw import *

NAME = 'gated_mix__softmax_full_mha__glu_gated_geglu__prompt'
M16 = 'v_mfma_f32_16x16x32_bf16'
M32 = 'v_mfma_f32_32x32x16_bf16'

class Cfg:
    diag = False
    clk = 's_memrealtime'
    ts_extra = ()
    stop_after = None
    pf_dist = 3
    bar_grp = 34
    pro_order = 0
    pf_first = 0
    cpf = True
    wpf = True
    kv_sig_at = 5
    kv_poll_at = 11
    s3_dist = 7
    o_poll = 32*4
    o_chk = 32*6
    s3_bar = 27
    part_sig = 15
    part_poll = 17*32+8
    force_fallback = False
    spin_max = 1 << 15

def f2u(x): return struct.unpack('<I', struct.pack('<f', x))[0]

WS_KV   = 0
WS_H    = 8 << 20
WS_O    = 22 << 20
WS_PART = 26 << 20
WS_FLAG = 34 << 20
WS_TS   = 35 << 20
WS_DBG  = 36 << 20
WS_SIZE = 40 << 20

sW, sCB, sRB, sX8, sJ = 3, 4, 5, 6, 7
rX, rQ, rG, rWS, rWD, rWO, rOUT, rDBG, rPF, rGW = 8, 12, 16, 20, 24, 28, 32, 36, 40, 44
sKX, sKQ, sKG, sKP, sPS = 48, 49, 50, 51, 52
sBUF = 53
sM = [54, 55, 56, 57, 58]
sDLT, sCNT = 59, 60
sT0, sT1, sT2, sT3 = 61, 62, 63, 64
sIDX, sMI, sNI, sKH = 65, 66, 67, 68
sA, sB, sC, sD, sE = 69, 70, 71, 72, 73
sK = 76
sEX = 78
sGR = 80
sKVB, sKVN, sKVO, sKVO2, sSLOT, sIT = 81, 82, 83, 84, 85, 86
sWD, sWD2, sWM, sHL, sRDL, sSL, sPO = 87, 88, 89, 90, 91, 92, 93
sHK, sPW, sOL, sOS, sHS = 94, 95, 96, 97, 98
aPARK = 224
sTS = 74
vTS = 0
def srd(r): return f's[{r}:{r+3}]'
def vr(a, n): return f'v[{a}:{a+n-1}]' if n > 1 else f'v{a}'
def ar(a, n): return f'a[{a}:{a+n-1}]' if n > 1 else f'a{a}'

LX, LQ, LG = 0, 32768, 45056
LBUF = 73728
LDS_BYTES = 163840

vLANE = 1
vDX = 2
vDQ = 10
vDG = 13
vPFA, vPFD = 20, 21
vRX = 22
vRQ = 24
vRG = 26
vQF = 32
ACC_V0 = 48
aXF = 112
aWR = 144
def acc(nt, tt):
    if nt < 6: return ('a', 16 + (nt * 4 + tt) * 4)
    if nt == 19: return ('a', tt * 4)
    return ('v', ACC_V0 + ((nt - 6) * 4 + tt) * 4)
def accs(nt, tt):
    f, b = acc(nt, tt); return f'{f}[{b}:{b+3}]'

vKVR, vKVD, vLN16, vPA, vPD = 2, 3, 4, 24, 25
vWD = 8
vONE = 16
vNM = [48, 64]; vS = [80, 96]; vO = [112, 128]; vP = [144, 152]
vK = [160, 168]; vV = [176, 184]; vL = [192, 196]
vR3 = 20
vWO = 26
vR4 = 30
vGA, vOA, vG = 2, 3, 6
vFP, vFD = 7, 15
vA3 = 64
vWR = 128
vA4 = 160
vPP = 192

class Gen:
    def __init__(self, cfg):
        self.c = cfg
        self.P = Prog()
        self.nts = 0
        self.ncpf = 0
        self.parked = {}
        self.main = []

    def ts(self, name=None):
        if not self.c.diag: return
        P = self.P
        if name is not None and name not in self.c.ts_extra: return
        P(f'{self.c.clk} s[{sTS}:{sTS+1}]')
        P('s_waitcnt lgkmcnt(0)')
        P(f'v_writelane_b32 v{vTS}, s{sTS}, {self.nts}')
        self.nts += 1

    def mksrd(self, r, lo, size):
        self.P(f'''
        s_mov_b32 s{r}, s{lo}
        s_mov_b32 s{r+1}, s{lo+1}
        s_mov_b32 s{r+2}, {size}
        s_mov_b32 s{r+3}, 0x20000''')

    def code_pf(self, lab, vt):
        k = self.ncpf; self.ncpf += 1
        return [f's_getpc_b64 s[{sK}:{sK+1}]\nL_cpf{k}:\ns_add_u32 s{sK}, s{sK}, {lab}-L_cpf{k}\ns_addc_u32 s{sK+1}, s{sK+1}, 0',
                f's_lshl_b32 s{sT3}, s{sW}, 13',
                f'v_lshl_add_u32 v{vt}, v{vLANE}, 7, s{sT3}',
                f'v_min_u32 v{vt}, L_codeend-{lab}-4, v{vt}',
                f'v_mov_b32 v{vt+1}, s{sK+1}',
                f'v_add_co_u32 v{vt}, vcc, s{sK}, v{vt}',
                f'v_addc_co_u32 v{vt+1}, vcc, 0, v{vt+1}, vcc',
                f'global_load_dword v{vt+2}, v[{vt}:{vt+1}], off']

    def park(self, name, v):
        self.parked[name] = aPARK + len(self.parked)
        assert self.parked[name] < 256
        self.P(f'v_accvgpr_write_b32 a{self.parked[name]}, v{v}')
    def unpark(self, name, v):
        return f'v_accvgpr_read_b32 v{v}, a{self.parked[name]}'

    def prologue(self):
        P, c = self.P, self.c
        P.seg('entry'); self.main.append('entry')
        KA = 80
        L = vLANE
        P(f"""
        s_cmp_ge_u32 s2, 256
        s_cbranch_scc1 L_end
        {(c.clk + ' s[74:75]') if c.diag else ''}
        s_load_dwordx16 s[{KA}:{KA+15}], s[0:1], 0
        s_load_dwordx4 s[{KA+16}:{KA+19}], s[0:1], 64
        s_load_dwordx2 s[{KA+20}:{KA+21}], s[0:1], 80
        v_lshrrev_b32 v2, 6, v0
        v_and_b32 v{vLANE}, 63, v0
        s_and_b32 s{sX8}, s2, 7
        v_readfirstlane_b32 s{sW}, v2
        s_lshr_b32 s{sJ}, s2, 3
        s_and_b32 s{sT0}, s{sJ}, 3
        s_lshl_b32 s{sCB}, s{sX8}, 2
        s_add_u32 s{sCB}, s{sCB}, s{sT0}
        s_lshr_b32 s{sRB}, s{sJ}, 2
        """)
        def addrX():
            P(f"""
            s_lshl_b32 s{sT0}, s{sRB}, 8
            s_lshl_b32 s{sT1}, s{sW}, 6
            s_add_u32 s{sT0}, s{sT0}, s{sT1}
            v_lshrrev_b32 v27, 3, v{L}
            v_add_u32 v27, s{sT0}, v27
            v_lshlrev_b32 v27, 11, v27
            v_and_b32 v28, 7, v{L}
            v_lshrrev_b32 v29, 4, v{L}
            v_xor_b32 v28, v28, v29
            v_lshl_add_u32 v{vDX}, v28, 4, v27
            v_xor_b32 v28, 4, v28
            v_lshl_add_u32 v{vDX+1}, v28, 4, v27
            v_add_u32 v{vDX+1}, {8*2048 - 1024}, v{vDX+1}
            """)
            for i in range(2, 8):
                P(f'v_add_u32 v{vDX+i}, {(i & ~1) * 8 * 2048 - 1024 * ((i & 3) & ~1)}, v{vDX + (i & 1)}')
        def addrQ():
            P(f"""
            v_lshrrev_b32 v27, 2, v{L}
            v_and_b32 v28, 3, v27
            v_bfe_u32 v29, v27, 2, 1
            v_lshl_or_b32 v28, v29, 3, v28
            v_bfe_u32 v30, v27, 3, 1
            v_lshl_or_b32 v28, v30, 2, v28
            s_lshl_b32 s{sT0}, s{sW}, 4
            v_add_u32 v28, s{sT0}, v28
            v_mul_u32_u24 v28, 6144, v28
            v_and_b32 v30, 3, v{L}
            v_lshlrev_b32 v29, 1, v29
            v_xor_b32 v30, v30, v29
            v_lshl_add_u32 v28, v30, 4, v28
            s_lshl_b32 s{sT0}, s{sCB}, 6
            v_add_u32 v{vDQ}, s{sT0}, v28
            v_add_u32 v{vDQ+1}, {2048-1024}, v{vDQ}
            v_add_u32 v{vDQ+2}, {4096-2048}, v{vDQ}
            """)
        def addrG(rng):
            P(f"""
            s_and_b32 s{sT0}, s{sW}, 1
            s_mul_i32 s{sT0}, s{sT0}, 448
            s_mul_i32 s{sT1}, s{sCB}, 224
            v_add_u32 v31, s{sT0}, v{L}
            """)
            for i in rng:
                P(f"""
                v_add_u32 v27, {64*i}, v31
                v_mul_u32_u24 v28, 4682, v27
                v_lshrrev_b32 v28, 16, v28
                v_mul_u32_u24 v29, 14, v28
                v_sub_u32 v27, v27, v29
                v_and_b32 v29, 0x33, v28
                v_bfe_u32 v30, v28, 2, 1
                v_lshl_or_b32 v29, v30, 3, v29
                v_bfe_u32 v30, v28, 3, 1
                v_lshl_or_b32 v29, v30, 2, v29
                v_mul_u32_u24 v29, 7168, v29
                v_lshl_add_u32 v29, v27, 4, v29
                v_add_u32 v29, s{sT1}, v29
                v_subrev_u32 v{vDG+i}, {1024*(i & 3)}, v29
                """)
        def addrPF():
            P(f"""
            s_and_b32 s{sT0}, s{sJ}, 3
            s_lshl_b32 s{sT0}, s{sT0}, 6
            s_lshl_b32 s{sT1}, s{sRB}, 8
            s_add_u32 s{sT0}, s{sT0}, s{sT1}
            v_add_u32 v27, s{sT0}, v{L}
            v_lshlrev_b32 v27, 11, v27
            s_lshl_b32 s{sT0}, s{sJ}, 1
            v_cmp_lt_u32 vcc, 6, v{L}
            v_mov_b32 v31, 0x80000000
            v_cndmask_b32 v28, 0, 1, vcc
            v_mul_u32_u24 v29, 7, v28
            v_sub_u32 v29, v{L}, v29
            v_add_u32 v28, s{sT0}, v28
            v_mul_u32_u24 v28, 7168, v28
            v_lshl_add_u32 v28, v29, 7, v28
            s_mul_i32 s{sT1}, s{sX8}, 896
            v_add_u32 v28, s{sT1}, v28
            v_cmp_gt_u32 vcc, 14, v{L}
            v_cndmask_b32 v28, v31, v28, vcc
            v_cmp_lt_u32 vcc, 5, v{L}
            v_cndmask_b32 v29, 0, 1, vcc
            v_mul_u32_u24 v30, 6, v29
            v_sub_u32 v30, v{L}, v30
            v_add_u32 v29, s{sT0}, v29
            v_mul_u32_u24 v29, 6144, v29
            v_lshrrev_b32 v{vPFD}, 1, v30
            v_lshl_add_u32 v29, v{vPFD}, 11, v29
            v_and_b32 v30, 1, v30
            v_lshl_add_u32 v29, v30, 7, v29
            s_lshl_b32 s{sT1}, s{sX8}, 8
            v_add_u32 v29, s{sT1}, v29
            v_cmp_gt_u32 vcc, 12, v{L}
            v_cndmask_b32 v29, v31, v29, vcc
            s_cmp_eq_u32 s{sW}, 0
            s_cselect_b64 vcc, -1, 0
            v_cndmask_b32 v{vPFA}, v28, v27, vcc
            s_cmp_eq_u32 s{sW}, 3
            s_cselect_b64 vcc, -1, 0
            v_cndmask_b32 v{vPFA}, v{vPFA}, v29, vcc
            """)
        def addrRD():
            P(f"""
            v_and_b32 v27, 15, v{L}
            v_lshrrev_b32 v28, 4, v{L}
            v_lshrrev_b32 v29, 1, v27
            v_xor_b32 v29, v29, v28
            s_lshl_b32 s{sT0}, s{sW}, 13
            v_lshlrev_b32 v30, 7, v27
            v_add_u32 v30, s{sT0}, v30
            v_lshl_add_u32 v{vRX}, v29, 4, v30
            v_xor_b32 v29, 4, v29
            v_lshl_add_u32 v{vRX+1}, v29, 4, v30
            v_lshrrev_b32 v29, 5, v{L}
            v_and_b32 v28, 1, v28
            v_lshrrev_b32 v30, 2, v27
            v_lshl_add_u32 v30, v28, 2, v30
            v_and_b32 v27, 3, v27
            v_lshlrev_b32 v27, 3, v27
            v_mul_u32_u24 v31, 3072, v29
            v_lshl_add_u32 v31, v30, 6, v31
            v_add_u32 v31, v31, v27
            v_add_u32 v31, {LQ}, v31
            v_lshl_add_u32 v{vRQ}, v28, 5, v31
            v_xor_b32 v28, 1, v28
            v_lshl_add_u32 v{vRQ+1}, v28, 5, v31
            v_lshl_add_u32 v30, v29, 4, v30
            v_mul_u32_u24 v30, 224, v30
            v_add_u32 v30, v30, v27
            v_add_u32 v{vRG}, {LG}, v30
            """)
        def m0s():
            P(f"""
            s_lshl_b32 s{sM[0]}, s{sW}, 13
            s_add_u32 s{sM[1]}, s{sM[0]}, 4096
            s_mul_i32 s{sM[2]}, s{sW}, 3072
            s_add_u32 s{sM[2]}, s{sM[2]}, {LQ}
            s_mul_i32 s{sM[3]}, s{sW}, 7168
            s_add_u32 s{sM[3]}, s{sM[3]}, {LG}
            s_add_u32 s{sM[4]}, s{sM[3]}, 4096
            s_mov_b32 s{sBUF}, 0
            s_mov_b32 s{sDLT}, {LBUF}
            s_mov_b32 s{sKX}, 0
            s_mov_b32 s{sKQ}, 0
            s_mov_b32 s{sKG}, 0
            """)
        def srd1():
            P('s_waitcnt lgkmcnt(0)')
            if c.diag:
                P(f'v_writelane_b32 v{vTS}, s{sTS}, 0'); self.nts = 1
            self.mksrd(rX, KA + 0, 2048 * 1024 * 2)
            self.mksrd(rQ, KA + 2, 1024 * 3072 * 2)
            P(f"""
            s_cmp_lt_u32 s{sW}, 2
            s_cselect_b32 s{rG}, s{KA+8}, s{KA+10}
            s_cselect_b32 s{rG+1}, s{KA+9}, s{KA+11}
            s_mov_b32 s{rG+2}, {1024*3584*2}
            s_mov_b32 s{rG+3}, 0x20000
            """)
        def srdPF():
            P(f"""
            s_cmp_eq_u32 s{sW}, 0
            s_cselect_b32 s{rPF}, s{rX}, s{rG}
            s_cselect_b32 s{rPF+1}, s{rX+1}, s{rG+1}
            s_cselect_b32 s{rPF+2}, s{rX+2}, s{rG+2}
            s_mov_b32 s{sPS}, {64*7168}
            s_cselect_b32 s{sPS}, 128, s{sPS}
            s_cmp_eq_u32 s{sW}, 3
            s_cselect_b32 s{rPF}, s{rQ}, s{rPF}
            s_cselect_b32 s{rPF+1}, s{rQ+1}, s{rPF+1}
            s_cselect_b32 s{rPF+2}, s{rQ+2}, s{rPF+2}
            s_cselect_b32 s{sPS}, {64*6144}, s{sPS}
            s_mov_b32 s{rPF+3}, 0x20000
            s_mul_i32 s{sKP}, s{sPS}, {c.pf_first}
            """)
        def pf(n):
            for s in range(n):
                P(self.pf_ins(), tag='pf')
                P(f's_add_u32 s{sKP}, s{sKP}, s{sPS}')
        def srd2():
            self.mksrd(rWO, KA + 4, 1024 * 1024 * 2)
            self.mksrd(rWD, KA + 12, 3584 * 1024 * 2)
            self.mksrd(rGW, KA + 14, 2048)
            self.mksrd(rOUT, KA + 16, 2048 * 1024 * 2)
            self.mksrd(rDBG, KA + 18, 256)
            self.mksrd(rWS, KA + 20, WS_SIZE)
            P(f"""
            s_lshl_b32 s{sIDX}, s{sCB}, 3
            s_add_u32 s{sIDX}, s{sIDX}, s{sRB}
            s_and_b32 s{sKH}, s{sX8}, 1
            s_lshr_b32 s{sMI}, s{sX8}, 1
            s_lshl_b32 s{sMI}, s{sMI}, 2
            s_lshr_b32 s{sT0}, s{sJ}, 3
            s_add_u32 s{sMI}, s{sMI}, s{sT0}
            s_and_b32 s{sNI}, s{sJ}, 7
            s_lshl_b32 s{sA}, s{sIDX}, 7
            s_add_u32 s{sA}, s{sA}, {WS_FLAG}
            s_mov_b32 s{sHK}, {WS_FLAG}
            s_lshl_b32 s{sT0}, s{sRB}, 8
            s_lshl_b32 s{sT1}, s{sCB}, 3
            s_add_u32 s{sT0}, s{sT0}, s{sT1}
            s_lshl_b32 s{sT1}, s{sW}, 1
            s_add_u32 s{sT0}, s{sT0}, s{sT1}
            s_lshl_b32 s{sGR}, s{sT0}, 11
            s_lshl_b32 s{sKVB}, s{sCB}, 18
            s_lshl_b32 s{sT0}, s{sRB}, 15
            s_add_u32 s{sB}, s{sKVB}, s{sT0}
            s_add_u32 s{sC}, s{sB}, 4096
            s_mov_b32 s{sKVN}, s{sRB}
            s_lshl_b32 s{sSLOT}, s{sW}, 13
            s_mul_i32 s{sWD}, s{sKH}, {1792*2048}
            s_add_u32 s{sPW}, s{sWD}, {384*2048}
            s_lshl_b32 s{sT0}, s{sNI}, 8
            s_add_u32 s{sWD}, s{sWD}, s{sT0}
            s_add_u32 s{sWD2}, s{sWD}, {16*2048}
            s_add_u32 s{sWM}, s{sSLOT}, 65536
            s_lshl_b32 s{sT0}, s{sMI}, 2
            s_add_u32 s{sT0}, s{sT0}, s{sW}
            s_lshl_b32 s{sOL}, s{sT0}, 16
            s_add_u32 s{sOL}, s{sOL}, {WS_O}
            s_mul_i32 s{sHL}, s{sT0}, 224
            s_mul_i32 s{sT1}, s{sKH}, 112
            s_add_u32 s{sHL}, s{sHL}, s{sT1}
            s_lshl_b32 s{sHL}, s{sHL}, 10
            s_add_u32 s{sHL}, s{sHL}, {WS_H}
            s_lshl_b32 s{sT0}, s2, 2
            s_add_u32 s{sT0}, s{sT0}, s{sW}
            s_lshl_b32 s{sPO}, s{sT0}, 13
            s_add_u32 s{sPO}, s{sPO}, {WS_PART}
            s_lshl_b32 s{sT0}, s{sRB}, 3
            s_lshl_b32 s{sT1}, s{sW}, 1
            s_add_u32 s{sT0}, s{sT0}, s{sT1}
            s_lshl_b32 s{sOS}, s{sT0}, 5
            s_add_u32 s{sOS}, s{sOS}, s{sCB}
            s_lshl_b32 s{sOS}, s{sOS}, 11
            s_add_u32 s{sOS}, s{sOS}, {WS_O}
            s_mul_i32 s{sT0}, s{sT0}, 224
            s_mul_i32 s{sT1}, s{sCB}, 7
            s_add_u32 s{sT0}, s{sT0}, s{sT1}
            s_lshl_b32 s{sT0}, s{sT0}, 10
            s_add_u32 s{sHS}, s{sT0}, {WS_H}
            """)
        def parkall():
            P(f"""
            v_lshrrev_b32 v32, 4, v{L}
            v_and_b32 v33, 1, v32
            v_lshlrev_b32 v33, 10, v33
            v_lshrrev_b32 v34, 1, v32
            v_lshl_or_b32 v33, v34, 9, v33
            v_bfe_u32 v34, v{L}, 3, 1
            v_lshl_or_b32 v33, v34, 8, v33
            v_and_b32 v34, 7, v{L}
            v_lshl_or_b32 v33, v34, 4, v33
            v_add_u32 v33, s{sSLOT}, v33
            """); self.park('KA', 33)
            P(f"""
            v_lshrrev_b32 v33, 1, v32
            v_lshlrev_b32 v33, 10, v33
            v_and_b32 v34, 1, v32
            v_lshl_or_b32 v33, v34, 9, v33
            v_and_b32 v34, 15, v{L}
            v_lshl_or_b32 v33, v34, 4, v33
            v_add_u32 v33, s{sSLOT}, v33
            """); self.park('VA', 33)
            P(f"""
            v_lshrrev_b32 v33, 2, v{L}
            v_xor_b32 v33, v33, v32
            v_and_b32 v33, 1, v33
            v_and_or_b32 v33, v{L}, 3, v33
            v_cmp_eq_u32 vcc, 0, v33
            v_mov_b32 v35, 0x3f803f80
            v_cndmask_b32 v33, 0, v35, vcc
            """); self.park('ONE', 33)
            P(f"""
            s_lshl_b32 s{sT0}, s{sW}, 5
            v_add_u32 v33, s{sT0}, v32
            v_lshlrev_b32 v33, 11, v33
            v_lshlrev_b32 v35, 2, v32
            v_xor_b32 v34, v34, v35
            v_lshl_add_u32 v33, v34, 4, v33
            """); self.park('WD0', 33)
            for i in range(1, 4):
                P(f'v_add_u32 v34, {i*(8192-1024)}, v33'); self.park(f'WD{i}', 34)
            P(f"""
            v_lshrrev_b32 v32, 5, v{L}
            v_bfe_u32 v33, v{L}, 2, 2
            v_lshl_add_u32 v32, v32, 3, v33
            v_bfe_u32 v34, v{L}, 4, 1
            v_lshlrev_b32 v34, 5, v34
            v_and_b32 v35, 3, v{L}
            v_lshl_add_u32 v34, v35, 3, v34
            v_lshl_add_u32 v35, v32, 8, v34
            v_add_u32 v35, 65536, v35
            s_lshl_b32 s{sT0}, s{sKH}, 1
            s_xor_b32 s{sT0}, s{sT0}, 2
            v_xor_b32 v36, s{sT0}, v33
            """)
            for n in range(4):
                P(f'v_xor_b32 v37, {n}, v36')
                P(f'v_lshl_add_u32 v37, v37, 6, v35'); self.park(f'R3{n}', 37)
            P(f"""
            v_lshl_add_u32 v35, v32, 7, v34
            v_add_u32 v35, 32768, v35
            v_lshrrev_b32 v33, 1, v33
            v_lshl_add_u32 v37, v33, 6, v35
            """); self.park('R40', 37)
            P(f"""
            v_xor_b32 v33, 1, v33
            v_lshl_add_u32 v37, v33, 6, v35
            """); self.park('R41', 37)
            P(f"""
            v_lshrrev_b32 v32, 5, v{L}
            v_bfe_u32 v33, v{L}, 3, 2
            v_lshl_add_u32 v32, v32, 3, v33
            s_lshl_b32 s{sT0}, s{sW}, 6
            v_add_u32 v32, s{sT0}, v32
            v_lshlrev_b32 v32, 11, v32
            v_bfe_u32 v33, v{L}, 4, 1
            v_lshlrev_b32 v33, 2, v33
            v_and_b32 v34, 7, v{L}
            v_xor_b32 v33, v33, v34
            v_lshl_add_u32 v33, v33, 4, v32
            """); self.park('WO0', 33)
            for i in range(1, 4):
                P(f'v_add_u32 v34, {(16*(i>>1) + 4*(i&1))*2048 - 1024*i}, v33'); self.park(f'WO{i}', 34)
            P(f"""
            v_and_b32 v33, 7, v{L}
            s_lshl_b32 s{sT0}, s{sCB}, 3
            v_add_u32 v33, s{sT0}, v33
            v_lshlrev_b32 v33, 7, v33
            """); self.park('PKV', 33)
            P(f"""
            v_and_b32 v33, 15, v{L}
            s_lshl_b32 s{sT0}, s{sKH}, 4
            v_add_u32 v33, s{sT0}, v33
            v_lshlrev_b32 v33, 3, v33
            v_bfe_u32 v34, v{L}, 4, 1
            s_and_b32 s{sT0}, s{sX8}, 6
            v_add3_u32 v33, v33, v34, s{sT0}
            v_lshlrev_b32 v33, 7, v33
            """); self.park('PH', 33)
            P(f"""
            v_and_b32 v33, 31, v{L}
            v_lshlrev_b32 v33, 3, v33
            v_lshrrev_b32 v34, 5, v{L}
            v_add3_u32 v33, v33, v34, s{sT0}
            v_lshlrev_b32 v33, 7, v33
            """); self.park('PO', 33)
            P(f"""
            s_lshl_b32 s{sT0}, s{sMI}, 7
            s_lshl_b32 s{sT1}, s{sW}, 5
            s_add_u32 s{sT0}, s{sT0}, s{sT1}
            v_and_b32 v32, 31, v{L}
            v_add_u32 v32, s{sT0}, v32
            v_bfe_u32 v33, v32, 3, 5
            v_lshlrev_b32 v33, 3, v33
            v_lshrrev_b32 v34, 8, v32
            v_add_u32 v33, v33, v34
            v_lshlrev_b32 v33, 7, v33
            v_and_b32 v34, 7, v32
            v_lshl_add_u32 v33, v34, 2, v33
            """); self.park('GA', 33)
            P(f"""
            v_lshlrev_b32 v32, 11, v32
            v_lshrrev_b32 v33, 5, v{L}
            v_lshl_add_u32 v33, v33, 4, v32
            """); self.park('OA', 33)
            P(f"""
            s_lshl_b32 s{sT0}, s{sJ}, 2
            s_add_u32 s{sT0}, s{sT0}, s{sW}
            s_lshl_b32 s{sT1}, s{sT0}, 13
            v_lshl_add_u32 v33, v{L}, 7, s{sT1}
            """); self.park('FWD', 33)
            P(f"""
            s_lshl_b32 s{sT1}, s{sT0}, 14
            s_lshl_b32 s{sT2}, s{sKH}, 7
            s_add_u32 s{sT1}, s{sT1}, s{sT2}
            v_lshl_add_u32 v33, v{L}, 8, s{sT1}
            """); self.park('FWO', 33)
            P(f"""
            s_lshr_b32 s{sT1}, s{sT0}, 3
            s_and_b32 s{sT2}, s{sX8}, 6
            s_lshl_b32 s{sT2}, s{sT2}, 3
            s_add_u32 s{sT1}, s{sT1}, s{sT2}
            s_lshl_b32 s{sT3}, s{sT1}, 16
            s_mul_i32 s{sT1}, s{sT1}, 224
            s_mul_i32 s{sT2}, s{sKH}, 112
            s_add_u32 s{sT1}, s{sT1}, s{sT2}
            s_add_u32 s{sT1}, s{sT1}, 56
            s_lshl_b32 s{sT1}, s{sT1}, 10
            s_and_b32 s{sT2}, s{sT0}, 7
            s_mul_i32 s{sT0}, s{sT2}, 7168
            s_add_u32 s{sT1}, s{sT1}, s{sT0}
            s_add_u32 s{sT1}, s{sT1}, {WS_H}
            v_min_u32 v33, 55, v{L}
            v_lshl_add_u32 v33, v33, 7, s{sT1}
            """); self.park('FH', 33)
            P(f"""
            s_lshl_b32 s{sT2}, s{sT2}, 13
            s_add_u32 s{sT3}, s{sT3}, s{sT2}
            s_add_u32 s{sT3}, s{sT3}, {WS_O}
            v_lshl_add_u32 v33, v{L}, 7, s{sT3}
            """); self.park('FO', 33)
        def zero():
            for i in range(112): P(f'v_accvgpr_write_b32 a{i}, 0')
            for i in range(48, 256): P(f'v_mov_b32 v{i}, 0')
        dl = self.p1_dma_list()
        dX0, dQ, dG0, dG1, dX1 = dl[0:5], dl[5:9], dl[9:14], dl[14:18], dl[18:23]
        def emit(*ls):
            for l in ls:
                for x in l: P.add(x)
        if c.pro_order == 0:
            addrPF(); srd1(); srdPF(); self.ts('srd'); pf(c.pf_dist - c.pf_first)
            for x in self.code_pf('L_p1_top', 40): P(x)
            addrX(); addrQ(); m0s(); addrG(range(7)); addrRD(); srd2(); parkall(); zero()
            emit(dX0, dQ, dG0, dG1, dX1)
        else:
            addrX(); m0s(); addrQ(); srd1(); self.ts('srd'); emit(dX0, dX1, dQ)
            addrG(range(4)); emit(dG0)
            addrPF(); srdPF()
            if c.pro_order == 2: pf(c.pf_dist - c.pf_first)
            addrG(range(4, 7)); addrRD(); srd2(); parkall(); zero()
            emit(dG1)
            if c.pro_order == 1: pf(c.pf_dist - c.pf_first)
            for x in self.code_pf('L_p1_top', 40): P(x)
        self.p1_dma_advance()
        self.signal(0, tag='rst', reg=31)
        self.ts('issued')

    def pf_ins(self):
        return f'buffer_load_dword v{vPFD}, v{vPFA}, {srd(rPF)}, s{sKP} offen'

    def p1_dma_list(self):
        L = []
        def m0(i): L.append(Ins(f's_add_u32 m0, s{sBUF}, s{sM[i]}'))
        def d(v, r, s, o): L.append(Ins(f'buffer_load_dwordx4 v{v}, {srd(r)}, s{s} offen offset:{o} lds', tag='D'))
        m0(0)
        for i in range(4): d(vDX + i, rX, sKX, 1024 * i)
        m0(2)
        for i in range(3): d(vDQ + i, rQ, sKQ, 1024 * i)
        m0(3)
        for i in range(4): d(vDG + i, rG, sKG, 1024 * i)
        m0(4)
        for i in range(4, 7): d(vDG + i, rG, sKG, 1024 * (i - 4))
        m0(1)
        for i in range(4, 8): d(vDX + i, rX, sKX, 1024 * (i - 4))
        return L

    def p1_adv_list(self):
        return [f's_add_u32 s{sKX}, s{sKX}, 128', f's_add_u32 s{sKQ}, s{sKQ}, {64*6144}',
                f's_add_u32 s{sKG}, s{sKG}, {64*7168}', f's_xor_b32 s{sBUF}, s{sBUF}, {LBUF}']
    def p1_dma_advance(self):
        for x in self.p1_adv_list(): self.P(x)

    @staticmethod
    def w_reads(F):
        ks, nt = (F % 40) // 20, F % 20
        slot = aWR + 4 * (F % 8)
        out = []
        for e in range(2):
            if nt < 6: a, off = vRQ + (nt & 1), ks * 6144 + (nt >> 1) * 1024 + e * 512
            elif nt < 13: a, off = vRG, ks * 7168 + e * 1792 + (nt - 6) * 32
            else: a, off = vRG, 14336 + ks * 7168 + e * 1792 + (nt - 13) * 32
            out.append(f'ds_read_b64_tr_b16 {ar(slot + 2*e, 2)}, v{a} offset:{off}')
        return out
    @staticmethod
    def x_read(ks, tt):
        return f'ds_read_b128 {ar(aXF + ks*16 + tt*4, 4)}, v{vRX+ks} offset:{2048*tt}'
    @staticmethod
    def p1_mfma(G, tt):
        ks, nt = G // 20, G % 20
        w = ar(aWR + 4 * (G % 8), 4); x = ar(aXF + ks * 16 + tt * 4, 4)
        a, b = (x, w) if nt in (4, 5) else (w, x)
        return f'{M16} {accs(nt, tt)}, {a}, {b}, {accs(nt, tt)}'

    def toggle_reads(self):
        return [f'v_add_u32 v{r}, s{sDLT}, v{r}' for r in (vRX, vRX + 1, vRQ, vRQ + 1, vRG)]

    def p1_groups(self, groups, fill):
        for G in groups:
            for tt in range(4):
                self.P(self.p1_mfma(G, tt))
                for x in fill.get((G, tt), []):
                    if isinstance(x, Ins): self.P.add(x)
                    else: self.P(x)

    def p1_fill(self, dma, last):
        B = self.c.bar_grp
        fill = {}
        def put(G, gap, x): fill.setdefault((G % 40, gap), []).append(x)
        late = list(range(40, B + 7 + 1))
        seq = []
        for F in late: seq += self.w_reads(F)
        pos = 0
        for x in seq:
            put(B + pos // 4, pos % 4, x); pos += 1
        Gfree = B + (pos + 3) // 4
        for F in range(B + 8, 47):
            G = max(F - 7, Gfree if F - 7 < Gfree else F - 7)
            r = self.w_reads(F); put(G, 0, r[0]); put(G, 1, r[1])
        for F in range(7, 40):
            r = self.w_reads(F); put(F - 7, 0, r[0]); put(F - 7, 1, r[1])
        xg = [36, 37, 38, 39] if Gfree <= 36 else [Gfree] * 4
        for tt in range(4): put(xg[tt], 2, self.x_read(0, tt))
        for tt in range(4): put(10 + tt, 2, self.x_read(1, tt))
        tg = self.toggle_reads()
        for i, x in enumerate(tg): put(B - 1, min(i, 3), x)
        put(B - 1, 3, f's_sub_u32 s{sDLT}, 0, s{sDLT}')
        if dma:
            L = self.p1_dma_list()
            G = Gfree
            pend = None
            for x in L:
                if x.op == 's_add_u32': pend = x; continue
                if pend is not None: put(G, 1 if (G % 40) in xg else 2, pend); pend = None
                put(G, 3, x); G += 1
            put(G, 3, Ins(self.pf_ins(), tag='pf')); G += 1
            for i, x in enumerate(self.p1_adv_list() + [f's_add_u32 s{sKP}, s{sKP}, s{sPS}']):
                put(G + i, 2, x)
        return fill

    def p1_main(self):
        P, c = self.P, self.c
        B = c.bar_grp
        P.seg('p1_head0'); self.main.append('p1_head0')
        fill = self.p1_fill(True, False)
        P.need('D', 'rst')
        P('s_barrier')
        self.ts()
        self.signal(1, ins=f'buffer_atomic_add v31, off, {srd(rDBG)}, 0 offset:252 sc1', reg=31)
        P(f's_mov_b32 s{sCNT}, 15')
        f0 = self.p1_fill(True, False)
        for G in range(B, 40):
            for tt in range(4):
                for x in f0.get((G, tt), []):
                    if isinstance(x, Ins): P.add(x)
                    else: P(x)
        P('s_branch L_p1_mid')
        P.seg('p1_A')
        P('.p2align 6')
        P('L_p1_top:')
        P.need('D')
        P('s_waitcnt lgkmcnt(0)')
        P('s_barrier')
        self.p1_groups(range(B, 40), fill)
        P.seg('p1_B')
        P('L_p1_mid:')
        fill.setdefault((B - 2, 2), []).append(f's_sub_u32 s{sCNT}, s{sCNT}, 1')
        fill.setdefault((B - 1, 3), []).append(f's_cmp_lg_u32 s{sCNT}, 0')
        self.p1_groups(range(0, B), fill)
        P('s_cbranch_scc1 L_p1_top')
        self.main += ['p1_B', 'p1_A', 'p1_B', 'p1_A', 'p1_B']
        P.seg('p1_last'); self.main.append('p1_last')
        fl = self.p1_fill(False, True)
        P.need('D')
        P('s_waitcnt lgkmcnt(0)')
        P('s_barrier')
        self.p1_groups(range(B, 40), fl)
        fl.setdefault((2, 3), []).append(f'v_lshlrev_b32 v21, 5, v{vLANE}')
        fl.setdefault((3, 3), []).append(Ins(f'buffer_load_dword v5, off, {srd(rDBG)}, 0 offset:252 sc1', tag='ann'))
        GX, GW = 32, 6
        for i, x in enumerate([f'buffer_load_dwordx4 {vr(GW,4)}, v21, {srd(rGW)}, 0 offen',
                               f'buffer_load_dwordx4 {vr(GW+4,4)}, v21, {srd(rGW)}, 0 offen offset:16',
                               f'buffer_load_dwordx4 {vr(GX,4)}, v21, {srd(rX)}, s{sGR} offen',
                               f'buffer_load_dwordx4 {vr(GX+4,4)}, v21, {srd(rX)}, s{sGR} offen offset:16',
                               f'buffer_load_dwordx4 {vr(GX+8,4)}, v21, {srd(rX)}, s{sGR} offen offset:2048',
                               f'buffer_load_dwordx4 {vr(GX+12,4)}, v21, {srd(rX)}, s{sGR} offen offset:2064']):
            fl.setdefault((4 + i, 3), []).append(x)
        if c.cpf:
            for i, x in enumerate(self.code_pf('L_epi', 28)): fl.setdefault((12 + i, 3), []).append(x)
        for k in list(fl.keys()):
            if k[0] == B - 1: fl[k] = [x for x in fl[k] if 'ds_read' in (x.text if isinstance(x, Ins) else x)]
        self.p1_groups(range(0, B), fl)
        self.p1_groups(range(B, 40), {})
        self.ts()

    def rd(self, nt, tt, tmp):
        f, b = acc(nt, tt)
        if f == 'v': return b
        for j in range(4): self.P(f'v_accvgpr_read_b32 v{tmp+j}, a{b+j}')
        return tmp

    def p1_epilogue(self):
        P, c = self.P, self.c
        L = vLANE
        P.seg('epi'); self.main.append('epi')
        P('L_epi:')
        vKA, vVA = 2, 3
        T = 14
        P(self.unpark('KA', vKA)); P(self.unpark('VA', vVA))
        P(f'v_lshlrev_b32 v{vLN16}, 4, v{L}')
        for tt in range(4):
            d = T + 8 + 4 * (tt & 1)
            for u in range(2):
                b = self.rd(2 + u, tt, T + 4 * u)
                P(f'v_cvt_pk_bf16_f32 v{d+2*u}, v{b}, v{b+1}')
                P(f'v_cvt_pk_bf16_f32 v{d+2*u+1}, v{b+2}, v{b+3}')
            P(f'buffer_store_dwordx4 {vr(d,4)}, v{vKA}, {srd(rWS)}, s{sB if tt < 2 else sC} offen offset:{128*(tt&1)} sc1', tag='kv')
            P(f'ds_write_b128 v{vKA}, {vr(d,4)} offset:{4096*(tt>>1) + 128*(tt&1)}', tag='kvl')
        for qb in range(2):
            for dt in range(2):
                d = T + 8 + 4 * dt
                for a in range(2):
                    b = self.rd(4 + dt, 2 * qb + a, T + 4 * a)
                    P(f'v_cvt_pk_bf16_f32 v{d+2*a}, v{b}, v{b+1}')
                    P(f'v_cvt_pk_bf16_f32 v{d+2*a+1}, v{b+2}, v{b+3}')
                P(f'buffer_store_dwordx4 {vr(d,4)}, v{vVA}, {srd(rWS)}, s{sB if qb == 0 else sC} offen offset:{2048+256*dt} sc1', tag='kv')
                P(f'ds_write_b128 v{vVA}, {vr(d,4)} offset:{4096*qb + 2048 + 256*dt}', tag='kvl')
        GX, GW = 32, 6
        P('v_mov_b32 v14, 0')
        P('v_mov_b32 v15, 0')
        for i in range(8):
            P(f'v_dot2_f32_bf16 v14, v{GX+i}, v{GW+i}, v14')
            P(f'v_dot2_f32_bf16 v15, v{GX+8+i}, v{GW+i}, v15')
        P('s_nop 2')
        for m in ('row_shr:1 row_mask:0xf', 'row_shr:2 row_mask:0xf', 'row_shr:4 row_mask:0xf', 'row_shr:8 row_mask:0xf',
                  'row_bcast:15 row_mask:0xa', 'row_bcast:31 row_mask:0xc'):
            P(f'v_add_f32 v14, v14, v14 {m} bank_mask:0xf bound_ctrl:1')
            P(f'v_add_f32 v15, v15, v15 {m} bank_mask:0xf bound_ctrl:1')
        nl2e = hex(f2u(-math.log2(math.e)))
        P(f"""
        v_cvt_pk_bf16_f32 v14, v14, v15
        v_and_b32 v15, 0xffff0000, v14
        v_lshlrev_b32 v14, 16, v14
        v_mul_f32 v14, {nl2e}, v14
        v_mul_f32 v15, {nl2e}, v15
        v_exp_f32 v14, v14
        v_exp_f32 v15, v15
        v_add_f32 v14, 1.0, v14
        v_add_f32 v15, 1.0, v15
        v_rcp_f32 v14, v14
        v_rcp_f32 v15, v15
        s_lshl_b32 s{sT0}, s{sW}, 3
        s_add_u32 s{sT0}, s{sT0}, s{sA}
        v_cvt_pk_bf16_f32 v14, v14, v15
        v_and_b32 v15, 0xffff0000, v14
        v_lshlrev_b32 v14, 16, v14
        s_mov_b32 exec_lo, 0
        s_mov_b32 exec_hi, 0x80000000
        buffer_store_dwordx2 v[14:15], off, {srd(rWS)}, s{sT0} offset:32 sc1
        s_mov_b64 exec, -1
        """, tag='g')
        qs = (32 ** -0.5) * math.log2(math.e)
        P(f's_mov_b32 s{sK}, {hex(f2u(qs))}')
        P(f's_mov_b32 s{sK+1}, {hex(f2u(qs))}')
        for tt in range(4):
            d = vQF + 4 * tt
            for u in range(2):
                b = self.rd(u, tt, 16 + 4 * u)
                for j in (0, 2): P(f'v_pk_mul_f32 v[{b+j}:{b+j+1}], v[{b+j}:{b+j+1}], s[{sK}:{sK+1}]')
                P(f'v_cvt_pk_bf16_f32 v{d+2*u}, v{b}, v{b+1}')
                P(f'v_cvt_pk_bf16_f32 v{d+2*u+1}, v{b+2}, v{b+3}')
        for qb in range(2):
            for i in range(4): P(f'v_permlane16_swap_b32 v{vQF+8*qb+i}, v{vQF+8*qb+4+i}')
        self.spin_check(lambda: P(f'buffer_load_dword v5, off, {srd(rDBG)}, 0 offset:252 sc1'),
                        'v_cmp_gt_u32 vcc, 0x100, v5')
        k0 = -2.0 * math.sqrt(2.0 / math.pi) * math.log2(math.e)
        k1 = k0 * 0.044715
        vK0 = 6
        P(f"""
        s_mov_b32 s{sK}, {hex(f2u(k1))}
        s_mov_b32 s{sK+1}, {hex(f2u(k1))}
        v_mov_b32 v{vK0}, {hex(f2u(k0))}
        v_mov_b32 v{vK0+1}, {hex(f2u(k0))}
        s_mov_b32 s{sB}, s{sHS}
        s_add_u32 s{sC}, s{sB}, 4096
        s_add_u32 s{sD}, s{sB}, {224*1024}
        s_add_u32 s{sE}, s{sD}, 4096
        """)
        self.hstores = []
        order = [(ft, qb) for ft in (5, 4, 3, 2, 1, 0, 6) for qb in (1, 0)]
        for n, (ft, qb) in enumerate(order):
            H = 252 - 4 * n
            tset = []
            for a in range(2):
                tt = 2 * qb + a
                x = acc(6 + ft, tt)[1]
                u = self.rd(13 + ft, tt, 16 + 4 * a)
                tset.append((x, u, 8 + 4 * a))
            pr = lambda b: f'v[{b}:{b+1}]'
            ops = []
            for (x, u, t) in tset:
                for h in (0, 2): ops.append((x + h, u + h, t + h))
            for (x, u, t) in ops: P(f'v_pk_mul_f32 {pr(t)}, {pr(x)}, {pr(x)}')
            for (x, u, t) in ops: P(f'v_pk_fma_f32 {pr(t)}, {pr(t)}, s[{sK}:{sK+1}], {pr(vK0)}')
            for (x, u, t) in ops: P(f'v_pk_mul_f32 {pr(t)}, {pr(t)}, {pr(x)}')
            for (x, u, t) in ops: P(f'v_exp_f32 v{t}, v{t}'); P(f'v_exp_f32 v{t+1}, v{t+1}')
            for (x, u, t) in ops: P(f'v_pk_mul_f32 {pr(x)}, {pr(x)}, {pr(u)}')
            for (x, u, t) in ops: P(f'v_pk_add_f32 {pr(t)}, {pr(t)}, 1.0 op_sel_hi:[1,0]')
            for (x, u, t) in ops: P(f'v_rcp_f32 v{t}, v{t}'); P(f'v_rcp_f32 v{t+1}, v{t+1}')
            for (x, u, t) in ops: P(f'v_pk_mul_f32 {pr(x)}, {pr(x)}, {pr(t)}')
            for i, (x, u, t) in enumerate(ops): P(f'v_cvt_pk_bf16_f32 v{H+i}, v{x}, v{x+1}')
            P(f'v_permlane16_swap_b32 v{H}, v{H+2}')
            P(f'v_permlane16_swap_b32 v{H+1}, v{H+3}')
            so = [[sB, sC], [sD, sE]][qb][ft >> 2]
            self.hstores.append(f'buffer_store_dwordx4 {vr(H,4)}, v{vLN16}, {srd(rWS)}, s{so} offen offset:{1024*(ft&3)} sc1')
            if n == c.kv_sig_at:
                self.ts('e')
                P.need('kv', 'g', 'kvl')
                self.ts('e')
                P('s_barrier')
                self.signal(1)
                self.ts('e')
            if n == c.kv_poll_at:
                P(self.unpark('PKV', vPA))
                P(self.poll())
        self.ts()

    def poll(self):
        return f'buffer_load_dword v{vPD}, v{vPA}, {srd(rWS)}, s{sHK} offen sc1'
    def poll_check(self, level):
        self.ts('pc')
        self.spin_check(lambda: self.P(self.poll()), f'v_cmp_gt_u32 vcc, {level}, v{vPD}')
        self.ts('pc')

    def att_tile(self, t, first, last, ex):
        P = self.P
        kb, qt = t >> 1, t & 1
        S, Sn = vS[t & 1], vS[(t + 1) & 1]
        Pc, Pp = vP[t & 1], vP[(t - 1) & 1]
        kn, qn = ((t + 1) >> 1) & 1, (t + 1) & 1
        kp, qp = ((t - 1) >> 1) & 1, (t - 1) & 1
        def X(k):
            for x in ex.get((t, k), []):
                if callable(x): x()
                elif isinstance(x, Ins): P.add(x)
                else: P(x)
        e = lambda i: P(f'v_exp_f32 v{S+i}, v{S+i}')
        cv = lambda i: P(f'v_cvt_pk_bf16_f32 v{Pc+i}, v{S+2*i}, v{S+2*i+1}')
        doqk = not (last and t == 15)
        doprev = not (first and t == 0)
        dord = not (last and kb == 7)
        nb = (kb + 1) & 1
        off = ((kb + 1) & 7) * 4096 + 2048 * qt
        dst = (vK if qt == 0 else vV)[nb]
        X('pre')
        if doqk: P(f'{M32} {vr(Sn,16)}, {vr(vK[kn],4)}, {vr(vQF+8*qn,4)}, {vr(vNM[qn],16)}')
        if dord: P(f'ds_read_b128 {vr(dst,4)}, v{vKVR} offset:{off}')
        X('a'); e(0); e(1); e(2)
        if doprev: P(f'{M32} {vr(vO[qp],16)}, {vr(vV[kp]+4,4)}, {vr(Pp+4,4)}, {vr(vO[qp],16)}')
        if dord: P(f'ds_read_b128 {vr(dst+4,4)}, v{vKVR} offset:{off+1024}')
        X('b'); cv(0); e(3); e(4); cv(1)
        if doprev: P(f'{M16} {vr(vL[qp],4)}, {vr(vONE,4)}, {vr(Pp+4,4)}, {vr(vL[qp],4)}')
        X('c'); e(5)
        if doqk: P(f'{M32} {vr(Sn,16)}, {vr(vK[kn]+4,4)}, {vr(vQF+8*qn+4,4)}, {vr(Sn,16)}')
        X('d'); e(6); cv(2); e(7); e(8); cv(3); e(9); e(10)
        z = first and t < 2
        P(f'{M32} {vr(vO[qt],16)}, {vr(vV[kb&1],4)}, {vr(Pc,4)}, {0 if z else vr(vO[qt],16)}')
        X('e'); cv(4); e(11); e(12); cv(5)
        P(f'{M16} {vr(vL[qt],4)}, {vr(vONE,4)}, {vr(Pc,4)}, {0 if z else vr(vL[qt],4)}')
        if dord: P('s_waitcnt lgkmcnt(0)')
        X('f'); e(13); e(14); e(15); cv(6); cv(7)

    def att_body(self, first, last, ex, needs=(), loop=False):
        P = self.P
        put = lambda t, k, x: ex.setdefault((t, k), []).append(x)
        if not last:
            put(0, 'c', f's_add_u32 s{sKVN}, s{sKVN}, 1')
            put(0, 'd', f's_and_b32 s{sKVN}, s{sKVN}, 7')
            put(0, 'e', f's_lshl_b32 s{sKVO}, s{sKVN}, 15')
            put(0, 'f', f's_add_u32 s{sKVO}, s{sKVO}, s{sKVB}')
            put(1, 'a', f's_xor_b32 s{sSLOT}, s{sSLOT}, 32768')
            put(1, 'c', f's_mov_b32 m0, s{sSLOT}')
            put(2, 'c', f's_add_u32 s{sKVO2}, s{sKVO}, 4096')
            put(3, 'c', f's_add_u32 m0, s{sSLOT}, 4096')
            for i in range(8):
                put(1 + i // 2, 'de'[i & 1], Ins(f'buffer_load_dwordx4 v{vKVD}, {srd(rWS)}, s{sKVO if i < 4 else sKVO2} offen offset:{1024*(i&3)} sc1 lds', tag='KV'))
            put(13, 'd', f'v_xor_b32 v{vKVR}, 32768, v{vKVR}')
            def bar():
                if not loop: self.ts('b')
                P.need('KV', *needs); P('s_waitcnt lgkmcnt(0)')
                if not loop: self.ts('b')
                P('s_barrier')
                if not loop: self.ts('b')
            ex.setdefault((14, 'pre'), []).insert(0, bar)
        for t in range(16): self.att_tile(t, first, last, ex)
        if not last and not loop: self.ts('att')

    def wd_dma(self, i):
        return Ins(f'buffer_load_dwordx4 v{vWD+(i&3)}, {srd(rWD)}, s{sWD if i < 4 else sWD2} offen offset:{1024*(i&3)} lds', tag='W')
    def wo_dma(self, i):
        return Ins(f'buffer_load_dwordx4 v{vWO+(i&3)}, {srd(rWO)}, s{sWD if i < 4 else sWD2} offen offset:{1024*(i&3)} lds', tag='W')
    def b_load(self, n):
        return Ins(f'buffer_load_dwordx4 {ar(4*(n%56),4)}, v{vLN16}, {srd(rWS)}, s{sHL} offen offset:{1024*(n&3)} sc1')

    def attention(self):
        P, c = self.P, self.c
        L = vLANE
        P.seg('att_pro'); self.main.append('att_pro')
        P(f"""
        ds_read_b128 {vr(vK[0],4)}, v{vLN16} offset:0
        ds_read_b128 {vr(vK[0]+4,4)}, v{vLN16} offset:1024
        ds_read_b128 {vr(vV[0],4)}, v{vLN16} offset:2048
        ds_read_b128 {vr(vV[0]+4,4)}, v{vLN16} offset:3072
        v_mov_b32 v{vKVR}, v{vLN16}
        v_add_u32 v{vKVD}, s{sSLOT}, v{vLN16}
        """)
        for i in range(4): P(self.unpark('ONE', vONE + i))
        for q in range(2):
            P(f'{M32} {vr(vS[q],16)}, {vr(vK[0],4)}, {vr(vQF+8*q,4)}, 0')
            P(f'{M32} {vr(vS[q],16)}, {vr(vK[0]+4,4)}, {vr(vQF+8*q+4,4)}, {vr(vS[q],16)}')
            for i in range(2): P(self.unpark(f'WD{2*q+i}', vWD + 2 * q + i))
        P(self.unpark('FWD', vFP))
        for lvl in range(8):
            for q in range(2):
                S = vS[q]
                if lvl < 7: P(f'v_max3_f32 v{12+q}, v{S+2*lvl+1}, v{S+2*lvl+2}, v{S if lvl == 0 else 12+q}')
                else: P(f'v_max_f32 v{12+q}, v{S+15}, v{12+q}')
        for q in range(2): P(f'v_mov_b32 v{14+q}, v{12+q}')
        for q in range(2): P(f'v_permlane32_swap_b32 v{12+q}, v{14+q}')
        for q in range(2): P(f'v_max_f32 v{12+q}, v{12+q}, v{14+q}')
        for q in range(2):
            for i in range(16): P(f'v_sub_f32 v{vNM[q]+i}, 0, v{12+q}')
        P(f'{M32} {vr(vS[0],16)}, {vr(vK[0],4)}, {vr(vQF,4)}, {vr(vNM[0],16)}')
        P(f'{M32} {vr(vS[0],16)}, {vr(vK[0]+4,4)}, {vr(vQF+4,4)}, {vr(vS[0],16)}')
        self.ts('att')
        hs = [Ins(x, tag='h') for x in self.hstores]
        P.seg('att0'); self.main.append('att0')
        ex = {(1, 'pre'): [lambda: self.poll_check(1)]}
        for i in range(7): ex.setdefault((6 + i, 'd'), []).append(hs[i])
        self.att_body(True, False, ex)
        P.seg('att1'); self.main.append('att1')
        ex = {(14, 'pre'): [lambda: self.signal(3)]}
        for i in range(7): ex.setdefault((5 + i, 'd'), []).append(hs[7 + i])
        ex.setdefault((15, 'f'), []).append(f's_mov_b32 s{sIT}, 3')
        self.att_body(False, False, ex, needs=('h',))
        P.seg('att2'); self.main += ['att2', 'att2', 'att2']
        P('L_att2:')
        ex = {(6, 'c'): [f's_mov_b32 m0, s{sWM}'], (8, 'c'): [f's_add_u32 m0, s{sWM}, 4096'],
              (10, 'c'): [f's_add_u32 s{sWD}, s{sWD}, {128*2048}'], (10, 'd'): [f's_add_u32 s{sWD2}, s{sWD2}, {128*2048}'],
              (10, 'e'): [f's_add_u32 s{sWM}, s{sWM}, 32768'], (15, 'c'): [f's_sub_u32 s{sIT}, s{sIT}, 1'],
              (15, 'f'): [f's_cmp_lg_u32 s{sIT}, 0']}
        for i in range(8): ex.setdefault((6 + i // 2, 'de'[i & 1]), []).append(self.wd_dma(i))
        if c.wpf:
            ex.setdefault((11, 'd'), []).append(f'buffer_load_dword v{vFD}, v{vFP}, {srd(rWD)}, s{sPW} offen')
            ex.setdefault((11, 'e'), []).append(f's_add_u32 s{sPW}, s{sPW}, {1 << 20}')
        self.att_body(False, False, ex, loop=True)
        P('s_cbranch_scc1 L_att2')
        P.seg('att2e'); self.main.append('att2e')
        self.ts('att')
        P.seg('att5'); self.main.append('att5')
        P(self.unpark('PH', vPA))
        P(self.poll())
        n = 0
        for it in (5, 6, 7):
            if it > 5:
                P.seg(f'att{it}'); self.main.append(f'att{it}')
            ex = {}
            if it == 5:
                ex[(5, 'pre')] = [lambda: self.poll_check(3)]
            if it == 6 and c.cpf:
                for i, x in enumerate(self.code_pf('L_norm', 12)): ex.setdefault((i // 3, 'abc'[i % 3]), []).append(x)
            if it == 7 and c.wpf:
                ex[(7, 'c')] = [self.unpark('FH', vFP)]
                ex[(7, 'd')] = [f'buffer_load_dword v{vFD}, v{vFP}, {srd(rWS)}, 0 offen sc1']
                ex[(8, 'c')] = [self.unpark('FWO', vFP)]
                ex[(8, 'd')] = [f'buffer_load_dword v{vFD}, v{vFP}, {srd(rWO)}, 0 offen']
            if it == 7:
                lst = [(f'R3{i}', vR3 + i) for i in range(4)] + [(f'R4{i}', vR4 + i) for i in range(2)] + [(f'WO{i}', vWO + i) for i in range(4)]
                for i, (nm, r) in enumerate(lst): P_ = ex.setdefault((10 + i // 2, 'cf'[i & 1]), []).append(self.unpark(nm, r))
            for t in range(5 if it < 7 else 0, 16):
                for k in 'de':
                    if n < 56:
                        ex.setdefault((t, k), []).append(self.b_load(n))
                        if n & 3 == 3: ex.setdefault((t, 'f'), []).append(f's_add_u32 s{sHL}, s{sHL}, 4096')
                        n += 1
            self.att_body(False, it == 7, ex, needs=('W',))
        assert n == 56
        P(f'{M32} {vr(vO[1],16)}, {vr(vV[1]+4,4)}, {vr(vP[1]+4,4)}, {vr(vO[1],16)}')
        P(f'{M16} {vr(vL[1],4)}, {vr(vONE,4)}, {vr(vP[1]+4,4)}, {vr(vL[1],4)}')
        self.ts()
        thr = hex(f2u(2.0 ** 30 if not c.force_fallback else 0.0))
        P(f"""
        s_mov_b32 s{sB}, s{sOS}
        s_add_u32 s{sC}, s{sOS}, 65536
        v_add_f32 v13, v{vL[0]}, v{vL[1]}
        v_cmp_ngt_f32 vcc, {thr}, v13
        s_cbranch_vccnz L_fallback
        """)
        self.pre_norm = list(self.main)
        P.seg('norm'); self.main.append('norm')
        P('L_norm:')
        for q in range(2): P(f'v_rcp_f32 v{12+q}, v{vL[q]}')
        for q in range(2):
            for i in range(16): P(f'v_mul_f32 v{vO[q]+i}, v{12+q}, v{vO[q]+i}')
            for i in range(8): P(f'v_cvt_pk_bf16_f32 v{vP[q]+i}, v{vO[q]+2*i}, v{vO[q]+2*i+1}')
            for cc in range(2):
                P(f'buffer_store_dwordx4 {vr(vP[q]+4*cc,4)}, v{vLN16}, {srd(rWS)}, s{sB if q == 0 else sC} offen offset:{1024*cc} sc1', tag='o')

    def fallback(self):
        P = self.P
        P.seg('fb_pro')
        P(f"""
        L_fallback:
        s_mov_b32 s{sKVO}, s{sKVB}
        s_mov_b32 s{sIT}, 64
        """)
        vM, vLL = 8, 10
        vM, vLL = 200, 202
        for q in range(2):
            P(f'v_mov_b32 v{vM+q}, 0xff800000')
            P(f'v_mov_b32 v{vLL+q}, 0')
            for i in range(16): P(f'v_mov_b32 v{vO[q]+i}, 0')
        P.seg('fb_loop')
        P('L_fb_loop:')
        for i in range(2): P(f'buffer_load_dwordx4 {vr(vK[0]+4*i,4)}, v{vLN16}, {srd(rWS)}, s{sKVO} offen offset:{1024*i} sc1')
        for i in range(2): P(f'buffer_load_dwordx4 {vr(vV[0]+4*i,4)}, v{vLN16}, {srd(rWS)}, s{sKVO} offen offset:{2048+1024*i} sc1')
        for q in range(2):
            S = vS[q]
            P(f'{M32} {vr(S,16)}, {vr(vK[0],4)}, {vr(vQF+8*q,4)}, 0')
            P(f'{M32} {vr(S,16)}, {vr(vK[0]+4,4)}, {vr(vQF+8*q+4,4)}, {vr(S,16)}')
        for q in range(2):
            S = vS[q]
            P(f'v_max3_f32 v12, v{S}, v{S+1}, v{vM+q}')
            for i in range(1, 8): P(f'v_max3_f32 v12, v{S+2*i}, v{S+2*i+1}, v12')
            P(f"""
            v_mov_b32 v13, v12
            v_permlane32_swap_b32 v12, v13
            v_max_f32 v12, v12, v13
            v_sub_f32 v13, v{vM+q}, v12
            v_exp_f32 v13, v13
            v_mov_b32 v{vM+q}, v12
            v_mul_f32 v{vLL+q}, v13, v{vLL+q}
            """)
            for i in range(16): P(f'v_mul_f32 v{vO[q]+i}, v13, v{vO[q]+i}')
            for i in range(16): P(f'v_sub_f32 v{S+i}, v{S+i}, v12')
            for i in range(16): P(f'v_exp_f32 v{S+i}, v{S+i}')
            for i in range(16): P(f'v_add_f32 v{vLL+q}, v{vLL+q}, v{S+i}')
            for i in range(8): P(f'v_cvt_pk_bf16_f32 v{vP[q]+i}, v{S+2*i}, v{S+2*i+1}')
            for m in range(2): P(f'{M32} {vr(vO[q],16)}, {vr(vV[0]+4*m,4)}, {vr(vP[q]+4*m,4)}, {vr(vO[q],16)}')
        P(f"""
        s_add_u32 s{sKVO}, s{sKVO}, 4096
        s_sub_u32 s{sIT}, s{sIT}, 1
        s_cmp_lg_u32 s{sIT}, 0
        s_cbranch_scc1 L_fb_loop
        """)
        P.seg('fb_end')
        for q in range(2):
            P(f"""
            v_mov_b32 v13, v{vLL+q}
            v_permlane32_swap_b32 v{vLL+q}, v13
            v_add_f32 v{vL[q]}, v{vLL+q}, v13
            """)
        P('s_branch L_norm')
        P('L_codeend:')

    def stage34(self):
        P, c = self.P, self.c
        L = vLANE
        P.seg('s3_pro'); self.main.append('s3_pro')
        P('s_waitcnt lgkmcnt(0)')
        P('s_barrier')
        P(f's_lshl_b32 s{sWM}, s{sW}, 13')
        P(self.unpark('PO', vPA)); P(self.unpark('GA', vGA)); P(self.unpark('OA', vOA)); P(self.unpark('FO', vFP))

        NF3, NF = 14 * 32, 18 * 32
        DW, B = c.s3_dist, c.s3_bar
        def reads(F):
            s, f = F // 32, F % 32
            slot = vWR + 4 * (F % 8)
            if s < 14: a, off, es = vR3 + (f & 3), (f >> 2) * 4096, 1024
            else: a, off, es = vR4 + (f & 1), (f >> 1) * 2048, 512
            return [f'ds_read_b64_tr_b16 {vr(slot+2*e,2)}, v{a} offset:{off+e*es}' for e in range(2)]
        def step_of(F):
            return F // 4 if F < NF3 else 112 + (F - NF3) // 2
        def mfma(F):
            n = step_of(F)
            d = vA3 + 16 * (F & 3) if F < NF3 else vA4 + 16 * (F & 1)
            return f'{M32} {vr(d,16)}, {vr(vWR+4*(F%8),4)}, {ar(4*(n%56),4)}, {0 if n in (0, 112) else vr(d,16)}'
        fill = {}
        put = lambda F, x: fill.setdefault(F, []).append(x)
        pre = {}
        putp = lambda F, x: pre.setdefault(F, []).append(x)
        slot_of = lambda s: (s + 2) % 5
        for s in (3, 4):
            G0 = (s - 3) * 13
            for i in range(8):
                G = G0 + 1 + (3 * i) // 2
                if i in (0, 4): put(G - 1, f's_add_u32 m0, s{sWM}, {(s-3)*32768 + 1024*i}')
                x = self.wd_dma(i); x.tag = f'W{s}'; put(G, x)
            put(G0 + 12, f's_add_u32 s{sWD}, s{sWD}, {128*2048}')
            put(G0 + 12, f's_add_u32 s{sWD2}, s{sWD2}, {128*2048}')
        for s in range(18):
            F0 = 32 * s
            for f in range(32):
                F = F0 + f
                G = F - DW
                if s > 0: G = max(G, F0 - 32 + B + f // 2)
                if G >= 0:
                    for x in reads(F): put(G, x)
            if s < 17:
                Fb = F0 + B
                def bar(s=s):
                    P.need(f'W{s+1}', *(['o'] if s == 0 else []), *(['part'] if s == c.part_sig else []))
                    P('s_waitcnt lgkmcnt(0)'); P('s_barrier')
                    if s == 0: self.signal(7)
                    if s == c.part_sig: self.signal(15)
                putp(Fb, bar)
                if s + 1 != 14:
                    d = (slot_of(s + 1) - slot_of(s)) * 32768
                    regs = [vR3 + i for i in range(4)] if s + 1 < 14 else [vR4, vR4 + 1]
                    for r in regs: put(Fb - 1, f'v_add_u32 v{r}, {d & 0xffffffff}, v{r}')
                nx = s + 5
                if nx < 18:
                    if nx == 14:
                        put(Fb, f's_lshl_b32 s{sWD}, s{sNI}, 8')
                        put(Fb, f's_lshl_b32 s{sT0}, s{sKH}, 7')
                        put(Fb, f's_add_u32 s{sWD}, s{sWD}, s{sT0}')
                        put(Fb, f's_add_u32 s{sWD2}, s{sWD}, {32*2048}')
                    for i in range(8):
                        G = Fb + 1 + 3 * i
                        if i in (0, 4): put(G - 1 if i else G, f's_add_u32 m0, s{sWM}, {slot_of(s)*32768 + 1024*i}')
                        x = self.wd_dma(i) if nx < 14 else self.wo_dma(i)
                        x.tag = f'W{nx}'
                        put(G + (1 if i == 0 else 0), x)
                    st = 128 * 2048 if nx < 14 else 256 * 2048
                    put(Fb + 24, f's_add_u32 s{sWD}, s{sWD}, {st}')
                    put(Fb + 24, f's_add_u32 s{sWD2}, s{sWD2}, {st}')
        for n in range(0, 176 - 56):
            F = 4 * n + 3 if n < 112 else NF3 + 2 * (n - 112) + 1
            m = n + 56
            if m == 112:
                put(F - 1, f's_mov_b32 s{sHL}, s{sOL}')
            put(F, self.b_load(m))
            if m & 3 == 3: put(F + 1, f's_add_u32 s{sHL}, s{sHL}, 4096')
        put(c.o_poll, self.poll())
        putp(c.o_chk, lambda: self.poll_check(7))
        if c.wpf: put(c.o_chk, f'buffer_load_dword v{vFD}, v{vFP}, {srd(rWS)}, 0 offen sc1')
        put(c.o_chk + 1, f'buffer_load_dword v{vG}, v{vGA}, {srd(rWS)}, s{sHK} offen offset:32 sc1')
        for i in range(8):
            put(NF3 + 3 + i, Ins(f'buffer_store_dwordx4 {vr(vA3+4*i,4)}, v{vLN16}, {srd(rWS)}, s{sPO if i < 4 else sT2} offen offset:{1024*(i&3)} sc1', tag='part'))
        put(NF3, f's_add_u32 s{sT2}, s{sPO}, 4096')
        put(NF3 + 12, f's_xor_b32 s{sPO}, s{sPO}, {4 << 13}')
        put(NF3 + 13, f's_xor_b32 s{sT2}, s{sT2}, {4 << 13}')
        put(NF3 + 14, f's_xor_b32 s{sT1}, s{sIDX}, 32')
        put(NF3 + 15, f's_lshl_b32 s{sT1}, s{sT1}, 7')
        put(NF3 + 16, f'v_mov_b32 v{vPA}, s{sT1}')
        put(c.part_poll, self.poll())
        for F in range(DW):
            for x in reads(F): P(x)
        for F in range(NF):
            for x in pre.get(F, []): x()
            if F == NF3: self.ts()
            elif F % 64 == 0: self.ts('s3')
            P(mfma(F))
            for x in fill.get(F, []):
                if isinstance(x, Ins): P.add(x)
                else: P(x)
        self.ts()
        self.poll_check(15)
        for i in range(8):
            P(f'buffer_load_dwordx4 {vr(vPP+4*i,4)}, v{vLN16}, {srd(rWS)}, s{sPO if i < 4 else sT2} offen offset:{1024*(i&3)} sc1')
        P(f"""
        v_sub_f32 v12, 1.0, v{vG}
        v_cvt_pk_bf16_f32 v12, v12, v12
        v_and_b32 v12, 0xffff0000, v12
        s_lshl_b32 s{sT0}, s{sNI}, 8
        s_lshl_b32 s{sT1}, s{sKH}, 7
        s_add_u32 s{sT0}, s{sT0}, s{sT1}
        """)
        for i in range(32): P(f'v_mul_f32 v{vA4+i}, v{vG}, v{vA4+i}')
        for nt in range(2):
            for hh in range(2):
                r0 = 16 * nt + 8 * hh
                for i in range(8): P(f'v_add_f32 v{vPP+r0+i}, v{vPP+r0+i}, v{vA3+32+r0+i}')
                for i in range(8): P(f'v_fma_f32 v{vPP+r0+i}, v{vPP+r0+i}, v12, v{vA4+r0+i}')
                d = vWR + 4 * (2 * nt + hh)
                for i in range(4): P(f'v_cvt_pk_bf16_f32 v{d+i}, v{vPP+r0+2*i}, v{vPP+r0+2*i+1}')
                P(f'v_permlane32_swap_b32 v{d}, v{d+2}')
                P(f'v_permlane32_swap_b32 v{d+1}, v{d+3}')
                P(f'buffer_store_dwordx4 {vr(d,4)}, v{vOA}, {srd(rOUT)}, s{sT0} offen offset:{64*nt+32*hh}')

    def signal(self, val, tag=None, ins=None, reg=5):
        P = self.P
        k = len(P.segs)
        P(f'''
        s_cmp_lg_u32 s{sW}, 0
        s_cbranch_scc1 L_sig{k}
        ''')
        P.seg(f'sig{k}'); self.main.append(f'sig{k}')
        P(f'''
        s_mov_b64 exec, 1
        v_mov_b32 v{reg}, {val}
        {ins or f'buffer_store_dword v{reg}, off, {srd(rWS)}, s{sA} sc1'}
        s_mov_b64 exec, -1
        ''', tag=tag)
        P.seg(f'sig{k}e'); self.main.append(f'sig{k}e')
        P(f'L_sig{k}:')

    def spin_check(self, reload, cmp, pre=None):
        P = self.P
        k = len(P.segs)
        if pre: P(pre)
        P(f's_mov_b32 s{sT3}, 0')
        P.seg(f'spin{k}'); self.main.append(f'spin{k}')
        P(f'L_spin{k}:')
        P(cmp)
        P(f'''
        s_cbranch_vccz L_spin{k}x
        ''')
        P.seg(f'spin{k}r')
        P(f'''
        s_add_u32 s{sT3}, s{sT3}, 1
        s_cmp_gt_u32 s{sT3}, {self.c.spin_max}
        s_cbranch_scc1 L_end
        s_sleep 2
        ''')
        reload()
        P(f's_branch L_spin{k}')
        self.main += [f'spin{k}r', f'spin{k}']
        P.seg(f'spin{k}x'); self.main.append(f'spin{k}x')
        P(f'L_spin{k}x:')

    def finish(self):
        P, c = self.P, self.c
        P.seg('fin'); self.main.append('fin')
        if c.diag:
            self.ts()
            P(f'''
            s_getreg_b32 s{sT0}, hwreg(HW_REG_XCC_ID)
            s_and_b32 s{sT0}, s{sT0}, 15
            v_writelane_b32 v{vTS}, s{sT0}, 31
            s_lshl_b32 s{sT0}, s2, 2
            s_add_u32 s{sT0}, s{sT0}, s{sW}
            s_lshl_b32 s{sT0}, s{sT0}, 7
            s_add_u32 s{sT0}, s{sT0}, {WS_TS}
            v_lshlrev_b32 v2, 2, v{vLANE}
            s_mov_b64 exec, 0xffffffff
            buffer_store_dword v{vTS}, v2, {srd(rWS)}, s{sT0} offen
            ''')
        P('''
        L_end:
        s_endpgm
        ''')

    def dump_q(self):
        P = self.P
        P.seg('dumpq'); self.main.append('dumpq')
        P(f'''
        s_lshl_b32 s{sT0}, s2, 2
        s_add_u32 s{sT0}, s{sT0}, s{sW}
        s_lshl_b32 s{sT0}, s{sT0}, 12
        s_add_u32 s{sT0}, s{sT0}, {WS_DBG}
        v_lshlrev_b32 v2, 4, v{vLANE}
        ''')
        for i in range(4):
            P(f'buffer_store_dwordx4 {vr(vQF+4*i,4)}, v2, {srd(rWS)}, s{sT0} offen offset:{1024*i}')

    def build(self):
        c = self.c
        self.prologue()
        self.p1_main()
        self.p1_epilogue()
        if c.stop_after == 'p1':
            for x in self.hstores: self.P(x)
            self.dump_q()
        else:
            self.attention()
            if c.stop_after != 'att': self.stage34()
        self.finish()
        P = self.P
        if c.stop_after != 'p1':
            self.fallback()
            P.path(*(self.pre_norm + ['fb_pro', 'fb_loop', 'fb_loop', 'fb_end'] + self.main[len(self.pre_norm):]))
        P.path(*self.main)
        skip = [n for n in self.main if not ((n.startswith('sig') and not n.endswith('e')) or n.endswith('r'))]
        sk2 = [n for i, n in enumerate(skip) if not (n.startswith('spin') and i and skip[i-1] == n)]
        P.path(*sk2)
        P.finalize()
        ref = open(f'cdna_kernels/{NAME}.s.ref').read()
        head = [l for l in ref.split('\n') if l.startswith(';') and '@launch' not in l and 'Override launch' not in l and 'grid=ceil' not in l]
        out = '\n'.join(head) + f'''
; @launch grid=(256,1,1) block=(256,1,1) lds={LDS_BYTES}
.amdgcn_target "amdgcn-amd-amdhsa--gfx950"
.text
.globl {NAME}_kernel
.p2align 8
.type {NAME}_kernel,@function
{NAME}_kernel:
''' + P.text() + f'''.section .rodata,"a"
.p2align 6
.amdhsa_kernel {NAME}_kernel
  .amdhsa_next_free_vgpr 512
  .amdhsa_next_free_sgpr 102
  .amdhsa_accum_offset 256
  .amdhsa_group_segment_fixed_size 0
  .amdhsa_kernarg_size 88
  .amdhsa_user_sgpr_count 2
  .amdhsa_user_sgpr_kernarg_segment_ptr 1
  .amdhsa_system_sgpr_workgroup_id_x 1
.end_amdhsa_kernel
'''
        return out

if __name__ == '__main__':
    cfg = Cfg()
    outp = f'cdna_kernels/{NAME}.s'
    for a in sys.argv[1:]:
        if a.startswith('-o'): outp = a[2:]
        else:
            k, v = a.split('=')
            setattr(cfg, k, eval(v))
    g = Gen(cfg)
    s = g.build()
    open(outp, 'w').write(s)
    g.P.stats()
    print('wrote', outp, len(s), 'bytes', 'nts', g.nts)
```

```python
import sys, math, struct
from asmfw import *

NAME = 'gated_mix__softmax_full_mha__glu_gated_geglu__prompt'
M16 = 'v_mfma_f32_16x16x32_bf16'
M32 = 'v_mfma_f32_32x32x16_bf16'

class Cfg:
    diag = False
    clk = 's_memrealtime'
    ts_extra = ()
    stop_after = None
    pf_dist = 3
    bar_grp = 34
    scramble = False
    amp = None
    pro_order = 0
    cpf0 = True
    mzero = True
    pf_first = 0
    cpf = True
    wpf = True
    kv_sig_at = 5
    kv_poll_at = 11
    s3_dist = 7
    o_poll = 210
    o_chk = 256
    ring = 70
    margin = 40
    vrate = 2.15
    part_chk = 530
    tail_at = 558
    stcost = 3.5
    credit0 = -6.0
    h_chk = 8
    rot = True
    s3_bar = 27
    part_sig = 14
    part_poll = 500
    force_fallback = False
    spin_max = 1 << 15

def f2u(x): return struct.unpack('<I', struct.pack('<f', x))[0]

WS_KV   = 0
WS_H    = 8 << 20
WS_O    = 22 << 20
WS_PART = 26 << 20
WS_FLAG = 34 << 20
WS_TS   = 35 << 20
WS_DBG  = 36 << 20
WS_SIZE = 40 << 20

sW, sCB, sRB, sX8, sJ = 3, 4, 5, 6, 7
rX, rQ, rG, rWS, rWD, rWO, rOUT, rDBG, rPF, rGW = 8, 12, 16, 20, 24, 28, 32, 36, 40, 44
sKX, sKQ, sKG, sKP, sPS = 48, 49, 50, 51, 52
sBUF = 53
sM = [54, 55, 56, 57, 58]
sDLT, sCNT = 59, 60
sT0, sT1, sT2, sT3 = 61, 62, 63, 64
sIDX, sMI, sNI, sKH = 65, 66, 67, 68
sA, sB, sC, sD, sE = 69, 70, 71, 72, 73
sK = 76
sEX = 78
sGR = 80
sKVB, sKVN, sKVO, sKVO2, sSLOT, sIT = 81, 82, 83, 84, 85, 86
sWD, sWD2, sWM, sHL, sRDL, sSL, sPO = 87, 88, 89, 90, 91, 92, 93
sHK, sPW, sOL, sOS, sHS, sANN, sWO = 94, 95, 96, 97, 98, 99, 100
aPARK = 224
sTS = 74
vTS = 0
def srd(r): return f's[{r}:{r+3}]'
def vr(a, n): return f'v[{a}:{a+n-1}]' if n > 1 else f'v{a}'
def ar(a, n): return f'a[{a}:{a+n-1}]' if n > 1 else f'a{a}'

LX, LQ, LG = 0, 32768, 45056
LBUF = 73728
LDS_BYTES = 163840

vLANE = 1
vDX = 2
vDQ = 10
vDG = 13
vPFA, vPFD = 20, 21
vRX = 22
vRQ = 24
vRG = 26
vF2, vF3 = 38, 39
vQF = 32
ACC_V0 = 48
aXF = 112
aWR = 144
def acc(nt, tt):
    if nt < 6: return ('a', 16 + (nt * 4 + tt) * 4)
    if nt == 19: return ('a', tt * 4)
    return ('v', ACC_V0 + ((nt - 6) * 4 + tt) * 4)
def accs(nt, tt):
    f, b = acc(nt, tt); return f'{f}[{b}:{b+3}]'

vKVR, vKVD, vLN16, vPA, vPD = 2, 3, 4, 24, 25
vWD = 8
vONE = 16
vNM = [48, 64]; vS = [80, 96]; vO = [112, 128]; vP = [144, 152]
vK = [160, 168]; vV = [176, 184]; vL = [192, 196]
vR3 = 20
vWO = 26
vR4 = 30
vGA, vOA, vG = 2, 3, 6
vFP, vFD = 7, 15
vA3 = 64
vWR = 128
vA4 = 160
vPP = 64

class Gen:
    def __init__(self, cfg):
        self.c = cfg
        self.P = Prog()
        self.nts = 0
        self.ncpf = 0
        self.parked = {}
        self.retries = []
        self.main = []

    def ts(self, name=None):
        if not self.c.diag: return
        P = self.P
        if name is not None and name not in self.c.ts_extra: return
        P(f'{self.c.clk} s[{sTS}:{sTS+1}]')
        P('s_waitcnt lgkmcnt(0)')
        P(f'v_writelane_b32 v{vTS}, s{sTS}, {self.nts}')
        self.nts += 1

    def mksrd(self, r, lo, size):
        self.P(f'''
        s_mov_b32 s{r}, s{lo}
        s_mov_b32 s{r+1}, s{lo+1}
        s_mov_b32 s{r+2}, {size}
        s_mov_b32 s{r+3}, 0x20000''')

    def code_pf(self, lab, vt):
        k = self.ncpf; self.ncpf += 1
        return [f's_getpc_b64 s[{sK}:{sK+1}]\nL_cpf{k}:\ns_add_u32 s{sK}, s{sK}, {lab}-L_cpf{k}\ns_addc_u32 s{sK+1}, s{sK+1}, 0',
                f's_lshl_b32 s{sT3}, s{sW}, 13',
                f'v_lshl_add_u32 v{vt}, v{vLANE}, 7, s{sT3}',
                f'v_min_u32 v{vt}, L_codeend-{lab}-4, v{vt}',
                f'v_mov_b32 v{vt+1}, s{sK+1}',
                f'v_add_co_u32 v{vt}, vcc, s{sK}, v{vt}',
                f'v_addc_co_u32 v{vt+1}, vcc, 0, v{vt+1}, vcc',
                f'global_load_dword v{vt+2}, v[{vt}:{vt+1}], off']

    def park(self, name, v):
        self.parked[name] = aPARK + len(self.parked)
        assert self.parked[name] < 256
        self.P(f'v_accvgpr_write_b32 a{self.parked[name]}, v{v}')
    def unpark(self, name, v):
        return f'v_accvgpr_read_b32 v{v}, a{self.parked[name]}'

    def prologue(self):
        P, c = self.P, self.c
        P.seg('entry'); self.main.append('entry')
        KA = 80
        L = vLANE
        P(f"""
        s_cmp_ge_u32 s2, 256
        s_cbranch_scc1 L_end
        {(c.clk + ' s[74:75]') if c.diag else ''}
        s_load_dwordx16 s[{KA}:{KA+15}], s[0:1], 0
        s_load_dwordx4 s[{KA+16}:{KA+19}], s[0:1], 64
        s_load_dwordx2 s[{KA+20}:{KA+21}], s[0:1], 80
        v_lshrrev_b32 v2, 6, v0
        v_and_b32 v{vLANE}, 63, v0
        {'s_lshr_b32 s%d, s2, 5' % sT0 if c.scramble else ''}
        {'s_and_b32 s2, s2, 31' if c.scramble else ''}
        {'s_lshl_b32 s2, s2, 3' if c.scramble else ''}
        {'s_or_b32 s2, s2, s%d' % sT0 if c.scramble else ''}
        s_and_b32 s{sX8}, s2, 7
        v_readfirstlane_b32 s{sW}, v2
        s_lshr_b32 s{sJ}, s2, 3
        s_and_b32 s{sT0}, s{sJ}, 3
        s_lshl_b32 s{sCB}, s{sX8}, 2
        s_add_u32 s{sCB}, s{sCB}, s{sT0}
        s_lshr_b32 s{sRB}, s{sJ}, 2
        """)
        if c.cpf0:
            for x in self.code_pf('L_pro', 40): P(x)
        P('L_pro:')
        def addrX():
            P(f"""
            s_lshl_b32 s{sT0}, s{sRB}, 8
            s_lshl_b32 s{sT1}, s{sW}, 6
            s_add_u32 s{sT0}, s{sT0}, s{sT1}
            v_lshrrev_b32 v27, 3, v{L}
            v_add_u32 v27, s{sT0}, v27
            v_lshlrev_b32 v27, 11, v27
            v_and_b32 v28, 7, v{L}
            v_lshrrev_b32 v29, 4, v{L}
            v_xor_b32 v28, v28, v29
            v_lshl_add_u32 v{vDX}, v28, 4, v27
            v_xor_b32 v28, 4, v28
            v_lshl_add_u32 v{vDX+1}, v28, 4, v27
            v_add_u32 v{vDX+1}, {8*2048 - 1024}, v{vDX+1}
            """)
            for i in range(2, 8):
                P(f'v_add_u32 v{vDX+i}, {(i & ~1) * 8 * 2048 - 1024 * ((i & 3) & ~1)}, v{vDX + (i & 1)}')
        def addrQ():
            P(f"""
            v_lshrrev_b32 v27, 2, v{L}
            v_and_b32 v28, 3, v27
            v_bfe_u32 v29, v27, 2, 1
            v_lshl_or_b32 v28, v29, 3, v28
            v_bfe_u32 v30, v27, 3, 1
            v_lshl_or_b32 v28, v30, 2, v28
            s_lshl_b32 s{sT0}, s{sW}, 4
            v_add_u32 v28, s{sT0}, v28
            v_mul_u32_u24 v28, 6144, v28
            v_and_b32 v30, 3, v{L}
            v_lshlrev_b32 v29, 1, v29
            v_xor_b32 v30, v30, v29
            v_lshl_add_u32 v28, v30, 4, v28
            s_lshl_b32 s{sT0}, s{sCB}, 6
            v_add_u32 v{vDQ}, s{sT0}, v28
            v_add_u32 v{vDQ+1}, {2048-1024}, v{vDQ}
            v_add_u32 v{vDQ+2}, {4096-2048}, v{vDQ}
            """)
        def addrG(rng):
            P(f"""
            s_and_b32 s{sT0}, s{sW}, 1
            s_mul_i32 s{sT0}, s{sT0}, 448
            s_mul_i32 s{sT1}, s{sCB}, 224
            v_add_u32 v31, s{sT0}, v{L}
            """)
            for i in rng:
                P(f"""
                v_add_u32 v27, {64*i}, v31
                v_mul_u32_u24 v28, 4682, v27
                v_lshrrev_b32 v28, 16, v28
                v_mul_u32_u24 v29, 14, v28
                v_sub_u32 v27, v27, v29
                v_and_b32 v29, 0x33, v28
                v_bfe_u32 v30, v28, 2, 1
                v_lshl_or_b32 v29, v30, 3, v29
                v_bfe_u32 v30, v28, 3, 1
                v_lshl_or_b32 v29, v30, 2, v29
                v_mul_u32_u24 v29, 7168, v29
                v_lshl_add_u32 v29, v27, 4, v29
                v_add_u32 v29, s{sT1}, v29
                v_subrev_u32 v{vDG+i}, {1024*(i & 3)}, v29
                """)
        def addrPF():
            P(f"""
            s_and_b32 s{sT0}, s{sJ}, 3
            s_lshl_b32 s{sT0}, s{sT0}, 6
            s_lshl_b32 s{sT1}, s{sRB}, 8
            s_add_u32 s{sT0}, s{sT0}, s{sT1}
            v_add_u32 v27, s{sT0}, v{L}
            v_lshlrev_b32 v27, 11, v27
            s_lshl_b32 s{sT0}, s{sJ}, 1
            v_cmp_lt_u32 vcc, 6, v{L}
            v_mov_b32 v31, 0x80000000
            v_cndmask_b32 v28, 0, 1, vcc
            v_mul_u32_u24 v29, 7, v28
            v_sub_u32 v29, v{L}, v29
            v_add_u32 v28, s{sT0}, v28
            v_mul_u32_u24 v28, 7168, v28
            v_lshl_add_u32 v28, v29, 7, v28
            s_mul_i32 s{sT1}, s{sX8}, 896
            v_add_u32 v28, s{sT1}, v28
            v_cmp_gt_u32 vcc, 14, v{L}
            v_cndmask_b32 v28, v31, v28, vcc
            v_cmp_lt_u32 vcc, 5, v{L}
            v_cndmask_b32 v29, 0, 1, vcc
            v_mul_u32_u24 v30, 6, v29
            v_sub_u32 v30, v{L}, v30
            v_add_u32 v29, s{sT0}, v29
            v_mul_u32_u24 v29, 6144, v29
            v_lshrrev_b32 v{vPFD}, 1, v30
            v_lshl_add_u32 v29, v{vPFD}, 11, v29
            v_and_b32 v30, 1, v30
            v_lshl_add_u32 v29, v30, 7, v29
            s_lshl_b32 s{sT1}, s{sX8}, 8
            v_add_u32 v29, s{sT1}, v29
            v_cmp_gt_u32 vcc, 12, v{L}
            v_cndmask_b32 v29, v31, v29, vcc
            s_cmp_eq_u32 s{sW}, 0
            s_cselect_b64 vcc, -1, 0
            v_cndmask_b32 v{vPFA}, v28, v27, vcc
            s_cmp_eq_u32 s{sW}, 3
            s_cselect_b64 vcc, -1, 0
            v_cndmask_b32 v{vPFA}, v{vPFA}, v29, vcc
            """)
        def addrRD():
            P(f"""
            v_and_b32 v27, 15, v{L}
            v_lshrrev_b32 v28, 4, v{L}
            v_lshrrev_b32 v29, 1, v27
            v_xor_b32 v29, v29, v28
            s_lshl_b32 s{sT0}, s{sW}, 13
            v_lshlrev_b32 v30, 7, v27
            v_add_u32 v30, s{sT0}, v30
            v_lshl_add_u32 v{vRX}, v29, 4, v30
            v_xor_b32 v29, 4, v29
            v_lshl_add_u32 v{vRX+1}, v29, 4, v30
            v_lshrrev_b32 v29, 5, v{L}
            v_and_b32 v28, 1, v28
            v_lshrrev_b32 v30, 2, v27
            v_lshl_add_u32 v30, v28, 2, v30
            v_and_b32 v27, 3, v27
            v_lshlrev_b32 v27, 3, v27
            v_mul_u32_u24 v31, 3072, v29
            v_lshl_add_u32 v31, v30, 6, v31
            v_add_u32 v31, v31, v27
            v_add_u32 v31, {LQ}, v31
            v_lshl_add_u32 v{vRQ}, v28, 5, v31
            v_xor_b32 v28, 1, v28
            v_lshl_add_u32 v{vRQ+1}, v28, 5, v31
            v_lshl_add_u32 v30, v29, 4, v30
            v_mul_u32_u24 v30, 224, v30
            v_add_u32 v30, v30, v27
            v_add_u32 v{vRG}, {LG}, v30
            """)
        def m0s():
            P(f"""
            s_lshl_b32 s{sM[0]}, s{sW}, 13
            s_add_u32 s{sM[1]}, s{sM[0]}, 4096
            s_mul_i32 s{sM[2]}, s{sW}, 3072
            s_add_u32 s{sM[2]}, s{sM[2]}, {LQ}
            s_mul_i32 s{sM[3]}, s{sW}, 7168
            s_add_u32 s{sM[3]}, s{sM[3]}, {LG}
            s_add_u32 s{sM[4]}, s{sM[3]}, 4096
            s_mov_b32 s{sBUF}, 0
            s_mov_b32 s{sDLT}, {LBUF}
            s_mov_b32 s{sKX}, 0
            s_mov_b32 s{sKQ}, 0
            s_mov_b32 s{sKG}, 0
            """)
        def srd1():
            P('s_waitcnt lgkmcnt(0)')
            if c.diag:
                P(f'v_writelane_b32 v{vTS}, s{sTS}, 0'); self.nts = 1
            self.mksrd(rX, KA + 0, 2048 * 1024 * 2)
            self.mksrd(rQ, KA + 2, 1024 * 3072 * 2)
            P(f"""
            s_cmp_lt_u32 s{sW}, 2
            s_cselect_b32 s{rG}, s{KA+8}, s{KA+10}
            s_cselect_b32 s{rG+1}, s{KA+9}, s{KA+11}
            s_mov_b32 s{rG+2}, {1024*3584*2}
            s_mov_b32 s{rG+3}, 0x20000
            """)
        def srdPF():
            P(f"""
            s_cmp_eq_u32 s{sW}, 0
            s_cselect_b32 s{rPF}, s{rX}, s{rG}
            s_cselect_b32 s{rPF+1}, s{rX+1}, s{rG+1}
            s_cselect_b32 s{rPF+2}, s{rX+2}, s{rG+2}
            s_mov_b32 s{sPS}, {64*7168}
            s_cselect_b32 s{sPS}, 128, s{sPS}
            s_cmp_eq_u32 s{sW}, 3
            s_cselect_b32 s{rPF}, s{rQ}, s{rPF}
            s_cselect_b32 s{rPF+1}, s{rQ+1}, s{rPF+1}
            s_cselect_b32 s{rPF+2}, s{rQ+2}, s{rPF+2}
            s_cselect_b32 s{sPS}, {64*6144}, s{sPS}
            s_mov_b32 s{rPF+3}, 0x20000
            s_mul_i32 s{sKP}, s{sPS}, {c.pf_first}
            """)
        def pf(n):
            for s in range(n):
                P(self.pf_ins(), tag='pf')
                P(f's_add_u32 s{sKP}, s{sKP}, s{sPS}')
        def srd2():
            self.mksrd(rWO, KA + 4, 1024 * 1024 * 2)
            self.mksrd(rWD, KA + 12, 3584 * 1024 * 2)
            self.mksrd(rGW, KA + 14, 2048)
            self.mksrd(rOUT, KA + 16, 2048 * 1024 * 2)
            self.mksrd(rDBG, KA + 18, 256)
            self.mksrd(rWS, KA + 20, WS_SIZE)
            P(f"""
            s_lshl_b32 s{sIDX}, s{sCB}, 3
            s_add_u32 s{sIDX}, s{sIDX}, s{sRB}
            s_and_b32 s{sKH}, s{sX8}, 1
            s_lshr_b32 s{sMI}, s{sX8}, 1
            s_lshl_b32 s{sMI}, s{sMI}, 2
            s_lshr_b32 s{sT0}, s{sJ}, 3
            s_add_u32 s{sMI}, s{sMI}, s{sT0}
            s_and_b32 s{sNI}, s{sJ}, 7
            s_lshl_b32 s{sA}, s{sIDX}, 7
            s_add_u32 s{sA}, s{sA}, {WS_FLAG}
            s_mov_b32 s{sHK}, {WS_FLAG}
            s_lshl_b32 s{sT0}, s{sRB}, 8
            s_lshl_b32 s{sT1}, s{sCB}, 3
            s_add_u32 s{sT0}, s{sT0}, s{sT1}
            s_lshl_b32 s{sT1}, s{sW}, 1
            s_add_u32 s{sT0}, s{sT0}, s{sT1}
            s_lshl_b32 s{sGR}, s{sT0}, 11
            s_lshl_b32 s{sKVB}, s{sCB}, 18
            s_lshl_b32 s{sT0}, s{sRB}, 15
            s_add_u32 s{sB}, s{sKVB}, s{sT0}
            s_add_u32 s{sC}, s{sB}, 4096
            s_mov_b32 s{sKVN}, s{sRB}
            s_lshl_b32 s{sSLOT}, s{sW}, 13
            s_mul_i32 s{sWD}, s{sKH}, {1792*2048}
            s_lshl_b32 s{sT0}, s{sNI}, 8
            s_add_u32 s{sWD}, s{sWD}, s{sT0}
            s_add_u32 s{sWD2}, s{sWD}, {16*2048}
            s_add_u32 s{sWM}, s{sSLOT}, 65536
            s_lshl_b32 s{sWO}, s{sNI}, {18 if c.rot else 31}
            s_lshl_b32 s{sT1}, s{sW}, 17
            s_add_u32 s{sWO}, s{sWO}, s{sT1}
            s_and_b32 s{sWO}, s{sWO}, 0x1fffff
            s_add_u32 s{sWO}, s{sWO}, s{sT0}
            s_lshl_b32 s{sT1}, s{sKH}, 7
            s_add_u32 s{sWO}, s{sWO}, s{sT1}
            s_lshl_b32 s{sT0}, s{sMI}, 2
            s_add_u32 s{sT0}, s{sT0}, s{sW}
            s_lshl_b32 s{sOL}, s{sT0}, 16
            s_add_u32 s{sOL}, s{sOL}, {WS_O}
            s_mul_i32 s{sHL}, s{sT0}, 224
            s_mul_i32 s{sT1}, s{sKH}, 112
            s_add_u32 s{sHL}, s{sHL}, s{sT1}
            s_lshl_b32 s{sHL}, s{sHL}, 10
            s_add_u32 s{sHL}, s{sHL}, {WS_H}
            s_lshl_b32 s{sT0}, s2, 2
            s_add_u32 s{sT0}, s{sT0}, s{sW}
            s_lshl_b32 s{sPO}, s{sT0}, 13
            s_add_u32 s{sPO}, s{sPO}, {WS_PART}
            s_lshl_b32 s{sT0}, s{sRB}, 3
            s_lshl_b32 s{sT1}, s{sW}, 1
            s_add_u32 s{sT0}, s{sT0}, s{sT1}
            s_lshl_b32 s{sOS}, s{sT0}, 5
            s_add_u32 s{sOS}, s{sOS}, s{sCB}
            s_lshl_b32 s{sOS}, s{sOS}, 11
            s_add_u32 s{sOS}, s{sOS}, {WS_O}
            s_mul_i32 s{sT0}, s{sT0}, 224
            s_mul_i32 s{sT1}, s{sCB}, 7
            s_add_u32 s{sT0}, s{sT0}, s{sT1}
            s_lshl_b32 s{sT0}, s{sT0}, 10
            s_add_u32 s{sHS}, s{sT0}, {WS_H}
            """)
        def parkall():
            P(f"""
            v_lshrrev_b32 v32, 4, v{L}
            v_and_b32 v33, 1, v32
            v_lshlrev_b32 v33, 10, v33
            v_lshrrev_b32 v34, 1, v32
            v_lshl_or_b32 v33, v34, 9, v33
            v_bfe_u32 v34, v{L}, 3, 1
            v_lshl_or_b32 v33, v34, 8, v33
            v_and_b32 v34, 7, v{L}
            v_lshl_or_b32 v33, v34, 4, v33
            v_add_u32 v33, s{sSLOT}, v33
            """); self.park('KA', 33)
            P(f"""
            v_lshrrev_b32 v33, 1, v32
            v_lshlrev_b32 v33, 10, v33
            v_and_b32 v34, 1, v32
            v_lshl_or_b32 v33, v34, 9, v33
            v_and_b32 v34, 15, v{L}
            v_lshl_or_b32 v33, v34, 4, v33
            v_add_u32 v33, s{sSLOT}, v33
            """); self.park('VA', 33)
            P(f"""
            v_lshrrev_b32 v33, 2, v{L}
            v_xor_b32 v33, v33, v32
            v_and_b32 v33, 1, v33
            v_and_or_b32 v33, v{L}, 3, v33
            v_cmp_eq_u32 vcc, 0, v33
            v_mov_b32 v35, 0x3f803f80
            v_cndmask_b32 v33, 0, v35, vcc
            """); self.park('ONE', 33)
            P(f"""
            s_lshl_b32 s{sT0}, s{sW}, 5
            v_add_u32 v33, s{sT0}, v32
            v_lshlrev_b32 v33, 11, v33
            v_lshlrev_b32 v35, 2, v32
            v_xor_b32 v34, v34, v35
            v_lshl_add_u32 v33, v34, 4, v33
            """); self.park('WD0', 33)
            for i in range(1, 4):
                P(f'v_add_u32 v34, {i*(8192-1024)}, v33'); self.park(f'WD{i}', 34)
            P(f"""
            v_lshrrev_b32 v32, 5, v{L}
            v_bfe_u32 v33, v{L}, 2, 2
            v_lshl_add_u32 v32, v32, 3, v33
            v_bfe_u32 v34, v{L}, 4, 1
            v_lshlrev_b32 v34, 5, v34
            v_and_b32 v35, 3, v{L}
            v_lshl_add_u32 v34, v35, 3, v34
            v_lshl_add_u32 v35, v32, 8, v34
            v_add_u32 v35, 65536, v35
            s_lshl_b32 s{sT0}, s{sKH}, 1
            s_xor_b32 s{sT0}, s{sT0}, 2
            v_xor_b32 v36, s{sT0}, v33
            """)
            for n in range(4):
                P(f'v_xor_b32 v37, {n}, v36')
                P(f'v_lshl_add_u32 v37, v37, 6, v35'); self.park(f'R3{n}', 37)
            P(f"""
            v_lshl_add_u32 v35, v32, 7, v34
            v_add_u32 v35, 32768, v35
            v_lshrrev_b32 v33, 1, v33
            v_lshl_add_u32 v37, v33, 6, v35
            """); self.park('R40', 37)
            P(f"""
            v_xor_b32 v33, 1, v33
            v_lshl_add_u32 v37, v33, 6, v35
            """); self.park('R41', 37)
            P(f"""
            v_lshrrev_b32 v32, 5, v{L}
            v_bfe_u32 v33, v{L}, 3, 2
            v_lshl_add_u32 v32, v32, 3, v33
            v_lshlrev_b32 v32, 11, v32
            v_bfe_u32 v33, v{L}, 4, 1
            v_lshlrev_b32 v33, 2, v33
            v_and_b32 v34, 7, v{L}
            v_xor_b32 v33, v33, v34
            v_lshl_add_u32 v33, v33, 4, v32
            """); self.park('WO0', 33)
            for i in range(1, 4):
                P(f'v_add_u32 v34, {(16*(i>>1) + 4*(i&1))*2048 - 1024*i}, v33'); self.park(f'WO{i}', 34)
            P(f"""
            v_and_b32 v33, 7, v{L}
            s_lshl_b32 s{sT0}, s{sCB}, 3
            v_add_u32 v33, s{sT0}, v33
            v_lshlrev_b32 v33, 7, v33
            """); self.park('PKV', 33)
            P(f"""
            v_and_b32 v33, 31, v{L}
            v_lshlrev_b32 v33, 3, v33
            s_lshr_b32 s{sT0}, s{sMI}, 1
            v_add_u32 v33, s{sT0}, v33
            v_lshlrev_b32 v33, 7, v33
            """); self.park('PO', 33)
            P(f"""
            s_lshl_b32 s{sT0}, s{sMI}, 7
            s_lshl_b32 s{sT1}, s{sW}, 5
            s_add_u32 s{sT0}, s{sT0}, s{sT1}
            v_and_b32 v32, 31, v{L}
            v_add_u32 v32, s{sT0}, v32
            v_bfe_u32 v33, v32, 3, 5
            v_lshlrev_b32 v33, 3, v33
            v_lshrrev_b32 v34, 8, v32
            v_add_u32 v33, v33, v34
            v_lshlrev_b32 v33, 7, v33
            v_and_b32 v34, 7, v32
            v_lshl_add_u32 v33, v34, 2, v33
            """); self.park('GA', 33)
            P(f"""
            v_lshlrev_b32 v32, 11, v32
            v_lshrrev_b32 v33, 5, v{L}
            v_lshl_add_u32 v33, v33, 4, v32
            """); self.park('OA', 33)
            P(f"""
            s_lshl_b32 s{sT0}, s2, 2
            s_add_u32 s{sT0}, s{sT0}, s{sW}
            s_mul_i32 s{sT1}, s{sT0}, {56*128}
            v_lshl_add_u32 v{vF2}, v{L}, 7, s{sT1}
            s_lshl_b32 s{sT1}, s{sT0}, 11
            v_lshl_add_u32 v{vF3}, v{L}, 7, s{sT1}
            v_mov_b32 v33, 0x80000000
            v_cmp_gt_u32 vcc, 4, v{L}
            v_cndmask_b32 v{vF2}, v33, v{vF2}, vcc
            v_cmp_gt_u32 vcc, 16, v{L}
            v_cndmask_b32 v{vF3}, v33, v{vF3}, vcc
            s_mov_b32 s{sPW}, 0
            """)
        def zero():
            if not c.mzero:
                for i in range(112): P(f'v_accvgpr_write_b32 a{i}, 0')
                for i in range(48, 256): P(f'v_mov_b32 v{i}, 0')
        def with_mzero(fn):
            if not c.mzero: return fn()
            for i in range(4): P(f'v_mov_b32 v{44+i}, 0')
            n0 = len(P.cur); fn(); body = P.cur[n0:]; del P.cur[n0:]
            zs = [f'{M32} {ar(16*i,16)}, v[44:47], v[44:47], 0' for i in range(7)] + [f'{M32} {vr(48+16*i,16)}, v[44:47], v[44:47], 0' for i in range(13)]
            step = len(body) // 20
            for i, x in enumerate(body):
                if i % step == step - 1 and zs: P(zs.pop(0))
                P.add(x)
            for z in zs: P(z)
        dl = self.p1_dma_list()
        dX0, dQ, dG0, dG1, dX1 = dl[0:5], dl[5:9], dl[9:14], dl[14:18], dl[18:23]
        def emit(*ls):
            for l in ls:
                for x in l: P.add(x)
        if c.pro_order in (0, 3):
            addrPF(); srd1(); srdPF(); self.ts('srd'); pf(c.pf_dist - c.pf_first if c.pro_order == 0 else 1)
            self.ts('srd')
            addrX(); addrQ(); m0s(); with_mzero(lambda: (addrG(range(7)), addrRD(), srd2(), parkall())); zero()
            self.ts('srd')
            emit(dX0, dQ, dG0)
            self.ts('srd')
            emit(dG1, dX1)
            self.ts('srd')
            if c.pro_order == 3: pf(c.pf_dist - 1)
        else:
            addrX(); m0s(); addrQ(); srd1(); self.ts('srd'); emit(dX0, dX1, dQ)
            self.ts('srd')
            addrG(range(4)); emit(dG0)
            self.ts('srd')
            addrPF(); srdPF()
            if c.pro_order == 2: pf(c.pf_dist - c.pf_first)
            self.ts('srd')
            with_mzero(lambda: (addrG(range(4, 7)), addrRD(), srd2(), parkall())); zero()
            self.ts('srd')
            emit(dG1)
            if c.pro_order == 1: pf(c.pf_dist - c.pf_first)
        self.p1_dma_advance()
        P(f'''
        s_mov_b64 exec, 1
        v_mov_b32 v31, 0
        buffer_store_dword v31, off, {srd(rWS)}, s{sA} sc1
        s_mov_b64 exec, -1
        ''', tag='rst')
        self.ts('issued')

    def pf_ins(self):
        return f'buffer_load_dword v{vPFD}, v{vPFA}, {srd(rPF)}, s{sKP} offen'

    def p1_dma_list(self):
        L = []
        def m0(i): L.append(Ins(f's_add_u32 m0, s{sBUF}, s{sM[i]}'))
        def d(v, r, s, o): L.append(Ins(f'buffer_load_dwordx4 v{v}, {srd(r)}, s{s} offen offset:{o} lds', tag='D'))
        m0(0)
        for i in range(4): d(vDX + i, rX, sKX, 1024 * i)
        m0(2)
        for i in range(3): d(vDQ + i, rQ, sKQ, 1024 * i)
        m0(3)
        for i in range(4): d(vDG + i, rG, sKG, 1024 * i)
        m0(4)
        for i in range(4, 7): d(vDG + i, rG, sKG, 1024 * (i - 4))
        m0(1)
        for i in range(4, 8): d(vDX + i, rX, sKX, 1024 * (i - 4))
        return L

    def p1_adv_list(self):
        return [f's_add_u32 s{sKX}, s{sKX}, 128', f's_add_u32 s{sKQ}, s{sKQ}, {64*6144}',
                f's_add_u32 s{sKG}, s{sKG}, {64*7168}', f's_xor_b32 s{sBUF}, s{sBUF}, {LBUF}']
    def p1_dma_advance(self):
        for x in self.p1_adv_list(): self.P(x)

    @staticmethod
    def w_reads(F):
        ks, nt = (F % 40) // 20, F % 20
        slot = aWR + 4 * (F % 8)
        out = []
        for e in range(2):
            if nt < 6: a, off = vRQ + (nt & 1), ks * 6144 + (nt >> 1) * 1024 + e * 512
            elif nt < 13: a, off = vRG, ks * 7168 + e * 1792 + (nt - 6) * 32
            else: a, off = vRG, 14336 + ks * 7168 + e * 1792 + (nt - 13) * 32
            out.append(f'ds_read_b64_tr_b16 {ar(slot + 2*e, 2)}, v{a} offset:{off}')
        return out
    @staticmethod
    def x_read(ks, tt):
        return f'ds_read_b128 {ar(aXF + ks*16 + tt*4, 4)}, v{vRX+ks} offset:{2048*tt}'
    @staticmethod
    def p1_mfma(G, tt):
        ks, nt = G // 20, G % 20
        w = ar(aWR + 4 * (G % 8), 4); x = ar(aXF + ks * 16 + tt * 4, 4)
        a, b = (x, w) if nt in (4, 5) else (w, x)
        return f'{M16} {accs(nt, tt)}, {a}, {b}, {accs(nt, tt)}'

    def toggle_reads(self):
        return [f'v_add_u32 v{r}, s{sDLT}, v{r}' for r in (vRX, vRX + 1, vRQ, vRQ + 1, vRG)]

    def p1_groups(self, groups, fill):
        for G in groups:
            for tt in range(4):
                self.P(self.p1_mfma(G, tt))
                for x in fill.get((G, tt), []):
                    if isinstance(x, Ins): self.P.add(x)
                    else: self.P(x)

    def p1_fill(self, dma, last, ann=False):
        B = self.c.bar_grp
        fill = {}
        def put(G, gap, x): fill.setdefault((G % 40, gap), []).append(x)
        late = list(range(40, B + 7 + 1))
        seq = []
        for F in late: seq += self.w_reads(F)
        pos = 0
        for x in seq:
            put(B + pos // 4, pos % 4, x); pos += 1
        Gfree = B + (pos + 3) // 4
        for F in range(B + 8, 47):
            G = max(F - 7, Gfree if F - 7 < Gfree else F - 7)
            r = self.w_reads(F); put(G, 0, r[0]); put(G, 1, r[1])
        for F in range(7, 40):
            r = self.w_reads(F); put(F - 7, 0, r[0]); put(F - 7, 1, r[1])
        xg = [36, 37, 38, 39] if Gfree <= 36 else [Gfree] * 4
        for tt in range(4): put(xg[tt], 2, self.x_read(0, tt))
        for tt in range(4): put(10 + tt, 2, self.x_read(1, tt))
        tg = self.toggle_reads()
        for i, x in enumerate(tg): put(B - 1, min(i, 3), x)
        put(B - 1, 3, f's_sub_u32 s{sDLT}, 0, s{sDLT}')
        if dma:
            L = self.p1_dma_list()
            G = Gfree
            pend = None
            for x in L:
                if x.op == 's_add_u32': pend = x; continue
                if pend is not None: put(G, 1 if (G % 40) in xg else 2, pend); pend = None
                put(G, 3, x); G += 1
            if ann:
                put(G, 1, f's_cmp_eq_u32 s{sCNT}, s{sANN}')
                put(G, 2, 's_cbranch_scc1 L_ann\nL_annret:')
            put(G, 3, Ins(self.pf_ins(), tag='pf')); G += 1
            if self.c.wpf:
                put(G, 3, Ins(f'buffer_load_dword v{vPFD}, v{vF2}, {srd(rWD)}, s{sPW} offen', tag='pf')); G += 1
                put(G, 3, f's_add_u32 s{sPW}, s{sPW}, 512')
            for i, x in enumerate(self.p1_adv_list() + [f's_add_u32 s{sKP}, s{sKP}, s{sPS}']):
                put(G + i, 2, x)
        return fill

    def p1_main(self):
        P, c = self.P, self.c
        B = c.bar_grp
        P.seg('p1_head0'); self.main.append('p1_head0')
        fill = self.p1_fill(True, False, ann=True)
        P.need('D')
        P('s_barrier')
        self.ts()
        P(f'''
        s_and_b32 s{sANN}, s{sJ}, 7
        s_sub_u32 s{sANN}, 14, s{sANN}
        s_cmp_eq_u32 s{sW}, 0
        s_cselect_b32 s{sANN}, s{sANN}, -1
        s_mov_b32 s{sCNT}, 15
        ''')
        f0 = self.p1_fill(True, False)
        for G in range(B, 40):
            for tt in range(4):
                for x in f0.get((G, tt), []):
                    if isinstance(x, Ins): P.add(x)
                    else: P(x)
        P('s_branch L_p1_mid')
        P.seg('p1_A')
        P('.p2align 6')
        P('L_p1_top:')
        def lts(k):
            if c.diag and 'p1it' in c.ts_extra:
                P(f'{c.clk} s[{sTS}:{sTS+1}]'); P(f's_sub_u32 s{sT0}, {47 + 16*k}, s{sCNT}'); P('s_waitcnt lgkmcnt(0)')
                P(f's_mov_b32 s{sT1}, m0'); P(f's_mov_b32 m0, s{sT0}')
                P(f'v_writelane_b32 v{vTS}, s{sTS}, m0'); P(f's_mov_b32 m0, s{sT1}')
        lts(0)
        P.need('D')
        P('s_waitcnt lgkmcnt(0)')
        P('s_barrier')
        lts(1)
        self.p1_groups(range(B, 40), fill)
        P.seg('p1_B')
        P('L_p1_mid:')
        fill.setdefault((B - 2, 2), []).append(f's_sub_u32 s{sCNT}, s{sCNT}, 1')
        fill.setdefault((B - 1, 3), []).append(f's_cmp_lg_u32 s{sCNT}, 0')
        self.p1_groups(range(0, B), fill)
        P('s_cbranch_scc1 L_p1_top')
        self.main += ['p1_B', 'p1_A', 'p1_B', 'p1_A', 'p1_B']
        P.seg('p1_last'); self.main.append('p1_last')
        fl = self.p1_fill(False, True)
        P.need('D')
        P('s_waitcnt lgkmcnt(0)')
        P('s_barrier')
        self.p1_groups(range(B, 40), fl)
        fl.setdefault((2, 3), []).append(f'v_lshlrev_b32 v21, 5, v{vLANE}')
        fl.setdefault((3, 3), []).append(Ins(f'buffer_load_dword v5, off, {srd(rDBG)}, 0 offset:252 sc1', tag='ann'))
        if c.wpf: fl.setdefault((1, 3), []).append(f'buffer_load_dword v{vPFD-1}, v{vF3}, {srd(rWO)}, 0 offen')
        GX, GW = 32, 6
        for i, x in enumerate([f'buffer_load_dwordx4 {vr(GW,4)}, v21, {srd(rGW)}, 0 offen',
                               f'buffer_load_dwordx4 {vr(GW+4,4)}, v21, {srd(rGW)}, 0 offen offset:16',
                               f'buffer_load_dwordx4 {vr(GX,4)}, v21, {srd(rX)}, s{sGR} offen',
                               f'buffer_load_dwordx4 {vr(GX+4,4)}, v21, {srd(rX)}, s{sGR} offen offset:16',
                               f'buffer_load_dwordx4 {vr(GX+8,4)}, v21, {srd(rX)}, s{sGR} offen offset:2048',
                               f'buffer_load_dwordx4 {vr(GX+12,4)}, v21, {srd(rX)}, s{sGR} offen offset:2064']):
            fl.setdefault((4 + i, 3), []).append(x)
        if c.cpf:
            for i, x in enumerate(self.code_pf('L_epi', 28)): fl.setdefault((12 + i, 3), []).append(x)
        for k in list(fl.keys()):
            if k[0] == B - 1: fl[k] = [x for x in fl[k] if 'ds_read' in (x.text if isinstance(x, Ins) else x)]
        self.p1_groups(range(0, B), fl)
        self.p1_groups(range(B, 40), {})
        self.ts()

    def rd(self, nt, tt, tmp):
        f, b = acc(nt, tt)
        if f == 'v': return b
        for j in range(4): self.P(f'v_accvgpr_read_b32 v{tmp+j}, a{b+j}')
        return tmp

    def p1_epilogue(self):
        P, c = self.P, self.c
        L = vLANE
        P.seg('epi'); self.main.append('epi')
        P('L_epi:')
        vKA, vVA = 2, 3
        T = 14
        P(self.unpark('KA', vKA)); P(self.unpark('VA', vVA))
        P(f'v_lshlrev_b32 v{vLN16}, 4, v{L}')
        for tt in range(4):
            d = T + 8 + 4 * (tt & 1)
            for u in range(2):
                b = self.rd(2 + u, tt, T + 4 * u)
                P(f'v_cvt_pk_bf16_f32 v{d+2*u}, v{b}, v{b+1}')
                P(f'v_cvt_pk_bf16_f32 v{d+2*u+1}, v{b+2}, v{b+3}')
            P(f'buffer_store_dwordx4 {vr(d,4)}, v{vKA}, {srd(rWS)}, s{sB if tt < 2 else sC} offen offset:{128*(tt&1)} sc1', tag='kv')
            P(f'ds_write_b128 v{vKA}, {vr(d,4)} offset:{4096*(tt>>1) + 128*(tt&1)}', tag='kvl')
        for qb in range(2):
            for dt in range(2):
                d = T + 8 + 4 * dt
                for a in range(2):
                    b = self.rd(4 + dt, 2 * qb + a, T + 4 * a)
                    P(f'v_cvt_pk_bf16_f32 v{d+2*a}, v{b}, v{b+1}')
                    P(f'v_cvt_pk_bf16_f32 v{d+2*a+1}, v{b+2}, v{b+3}')
                P(f'buffer_store_dwordx4 {vr(d,4)}, v{vVA}, {srd(rWS)}, s{sB if qb == 0 else sC} offen offset:{2048+256*dt} sc1', tag='kv')
                P(f'ds_write_b128 v{vVA}, {vr(d,4)} offset:{4096*qb + 2048 + 256*dt}', tag='kvl')
        GX, GW = 32, 6
        P('v_mov_b32 v14, 0')
        P('v_mov_b32 v15, 0')
        for i in range(8):
            P(f'v_dot2_f32_bf16 v14, v{GX+i}, v{GW+i}, v14')
            P(f'v_dot2_f32_bf16 v15, v{GX+8+i}, v{GW+i}, v15')
        P('s_nop 2')
        for m in ('row_shr:1 row_mask:0xf', 'row_shr:2 row_mask:0xf', 'row_shr:4 row_mask:0xf', 'row_shr:8 row_mask:0xf',
                  'row_bcast:15 row_mask:0xa', 'row_bcast:31 row_mask:0xc'):
            P(f'v_add_f32 v14, v14, v14 {m} bank_mask:0xf bound_ctrl:1')
            P(f'v_add_f32 v15, v15, v15 {m} bank_mask:0xf bound_ctrl:1')
        nl2e = hex(f2u(-math.log2(math.e)))
        P(f"""
        v_cvt_pk_bf16_f32 v14, v14, v15
        v_and_b32 v15, 0xffff0000, v14
        v_lshlrev_b32 v14, 16, v14
        v_mul_f32 v14, {nl2e}, v14
        v_mul_f32 v15, {nl2e}, v15
        v_exp_f32 v14, v14
        v_exp_f32 v15, v15
        v_add_f32 v14, 1.0, v14
        v_add_f32 v15, 1.0, v15
        v_rcp_f32 v14, v14
        v_rcp_f32 v15, v15
        s_lshl_b32 s{sT0}, s{sW}, 3
        s_add_u32 s{sT0}, s{sT0}, s{sA}
        v_cvt_pk_bf16_f32 v14, v14, v15
        v_and_b32 v15, 0xffff0000, v14
        v_lshlrev_b32 v14, 16, v14
        s_mov_b32 exec_lo, 0
        s_mov_b32 exec_hi, 0x80000000
        buffer_store_dwordx2 v[14:15], off, {srd(rWS)}, s{sT0} offset:32 sc1
        s_mov_b64 exec, -1
        """, tag='g')
        qs = (32 ** -0.5) * math.log2(math.e)
        P(f's_mov_b32 s{sK}, {hex(f2u(qs))}')
        P(f's_mov_b32 s{sK+1}, {hex(f2u(qs))}')
        for tt in range(4):
            d = vQF + 4 * tt
            for u in range(2):
                b = self.rd(u, tt, 16 + 4 * u)
                for j in (0, 2): P(f'v_pk_mul_f32 v[{b+j}:{b+j+1}], v[{b+j}:{b+j+1}], s[{sK}:{sK+1}]')
                P(f'v_cvt_pk_bf16_f32 v{d+2*u}, v{b}, v{b+1}')
                P(f'v_cvt_pk_bf16_f32 v{d+2*u+1}, v{b+2}, v{b+3}')
        for qb in range(2):
            for i in range(4): P(f'v_permlane16_swap_b32 v{vQF+8*qb+i}, v{vQF+8*qb+4+i}')
        self.spin_check(f'buffer_load_dword v5, off, {srd(rDBG)}, 0 offset:252 sc1',
                        'v_cmp_gt_u32 vcc, 0x100, v5')
        k0 = -2.0 * math.sqrt(2.0 / math.pi) * math.log2(math.e)
        k1 = k0 * 0.044715
        vK0 = 6
        P(f"""
        s_mov_b32 s{sK}, {hex(f2u(k1))}
        s_mov_b32 s{sK+1}, {hex(f2u(k1))}
        v_mov_b32 v{vK0}, {hex(f2u(k0))}
        v_mov_b32 v{vK0+1}, {hex(f2u(k0))}
        s_mov_b32 s{sB}, s{sHS}
        s_add_u32 s{sC}, s{sB}, 4096
        s_add_u32 s{sD}, s{sB}, {224*1024}
        s_add_u32 s{sE}, s{sD}, 4096
        """)
        self.hstores = []
        order = [(ft, qb) for ft in (5, 4, 3, 2, 1, 0, 6) for qb in (1, 0)]
        for n, (ft, qb) in enumerate(order):
            H = 252 - 4 * n
            tset = []
            for a in range(2):
                tt = 2 * qb + a
                x = acc(6 + ft, tt)[1]
                u = self.rd(13 + ft, tt, 16 + 4 * a)
                tset.append((x, u, 8 + 4 * a))
            pr = lambda b: f'v[{b}:{b+1}]'
            ops = []
            for (x, u, t) in tset:
                for h in (0, 2): ops.append((x + h, u + h, t + h))
            for (x, u, t) in ops: P(f'v_pk_mul_f32 {pr(t)}, {pr(x)}, {pr(x)}')
            for (x, u, t) in ops: P(f'v_pk_fma_f32 {pr(t)}, {pr(t)}, s[{sK}:{sK+1}], {pr(vK0)}')
            for (x, u, t) in ops: P(f'v_pk_mul_f32 {pr(t)}, {pr(t)}, {pr(x)}')
            for (x, u, t) in ops: P(f'v_exp_f32 v{t}, v{t}'); P(f'v_exp_f32 v{t+1}, v{t+1}')
            for (x, u, t) in ops: P(f'v_pk_mul_f32 {pr(x)}, {pr(x)}, {pr(u)}')
            for (x, u, t) in ops: P(f'v_pk_add_f32 {pr(t)}, {pr(t)}, 1.0 op_sel_hi:[1,0]')
            for (x, u, t) in ops: P(f'v_rcp_f32 v{t}, v{t}'); P(f'v_rcp_f32 v{t+1}, v{t+1}')
            for (x, u, t) in ops: P(f'v_pk_mul_f32 {pr(x)}, {pr(x)}, {pr(t)}')
            for i, (x, u, t) in enumerate(ops): P(f'v_cvt_pk_bf16_f32 v{H+i}, v{x}, v{x+1}')
            P(f'v_permlane16_swap_b32 v{H}, v{H+2}')
            P(f'v_permlane16_swap_b32 v{H+1}, v{H+3}')
            so = [[sB, sC], [sD, sE]][qb][ft >> 2]
            self.hstores.append(f'buffer_store_dwordx4 {vr(H,4)}, v{vLN16}, {srd(rWS)}, s{so} offen offset:{1024*(ft&3)} sc1')
            if n == c.kv_sig_at:
                self.ts('e')
                P.need('kv', 'g', 'kvl')
                self.ts('e')
                P('s_barrier')
                self.signal(1)
                self.ts('e')
            if n == c.kv_poll_at:
                P(self.unpark('PKV', vPA))
                P(self.poll())
        self.ts()

    def poll(self):
        return f'buffer_load_dword v{vPD}, v{vPA}, {srd(rWS)}, s{sHK} offen sc1'
    def poll_check(self, level):
        self.ts('pc')
        self.spin_check(self.poll(), f'v_cmp_gt_u32 vcc, {level}, v{vPD}')
        self.ts('pc')

    def att_tile(self, t, first, last, ex):
        P = self.P
        kb, qt = t >> 1, t & 1
        S, Sn = vS[t & 1], vS[(t + 1) & 1]
        Pc, Pp = vP[t & 1], vP[(t - 1) & 1]
        kn, qn = ((t + 1) >> 1) & 1, (t + 1) & 1
        kp, qp = ((t - 1) >> 1) & 1, (t - 1) & 1
        def X(k):
            for x in ex.get((t, k), []):
                if callable(x): x()
                elif isinstance(x, Ins): P.add(x)
                else: P(x)
        e = lambda i: P(f'v_exp_f32 v{S+i}, v{S+i}')
        cv = lambda i: P(f'v_cvt_pk_bf16_f32 v{Pc+i}, v{S+2*i}, v{S+2*i+1}')
        doqk = not (last and t == 15)
        doprev = not (first and t == 0)
        dord = not (last and kb == 7)
        nb = (kb + 1) & 1
        off = ((kb + 1) & 7) * 4096 + 2048 * qt
        dst = (vK if qt == 0 else vV)[nb]
        X('pre')
        if doqk: P(f'{M32} {vr(Sn,16)}, {vr(vK[kn],4)}, {vr(vQF+8*qn,4)}, {vr(vNM[qn],16)}')
        if dord: P(f'ds_read_b128 {vr(dst,4)}, v{vKVR} offset:{off}')
        X('a'); e(0); e(1); e(2)
        if doprev: P(f'{M32} {vr(vO[qp],16)}, {vr(vV[kp]+4,4)}, {vr(Pp+4,4)}, {vr(vO[qp],16)}')
        if dord: P(f'ds_read_b128 {vr(dst+4,4)}, v{vKVR} offset:{off+1024}')
        X('b'); cv(0); e(3); e(4); cv(1)
        if doprev: P(f'{M16} {vr(vL[qp],4)}, {vr(vONE,4)}, {vr(Pp+4,4)}, {vr(vL[qp],4)}')
        X('c'); e(5)
        if doqk: P(f'{M32} {vr(Sn,16)}, {vr(vK[kn]+4,4)}, {vr(vQF+8*qn+4,4)}, {vr(Sn,16)}')
        X('d'); e(6); cv(2); e(7); e(8); cv(3); e(9); e(10)
        z = first and t < 2
        P(f'{M32} {vr(vO[qt],16)}, {vr(vV[kb&1],4)}, {vr(Pc,4)}, {0 if z else vr(vO[qt],16)}')
        X('e'); cv(4); e(11); e(12); cv(5)
        P(f'{M16} {vr(vL[qt],4)}, {vr(vONE,4)}, {vr(Pc,4)}, {0 if z else vr(vL[qt],4)}')
        if dord: P('s_waitcnt lgkmcnt(0)')
        X('f'); e(13); e(14); e(15); cv(6); cv(7)

    def att_body(self, first, last, ex, needs=(), loop=False):
        P = self.P
        put = lambda t, k, x: ex.setdefault((t, k), []).append(x)
        if not last:
            put(0, 'c', f's_add_u32 s{sKVN}, s{sKVN}, 1')
            put(0, 'd', f's_and_b32 s{sKVN}, s{sKVN}, 7')
            put(0, 'e', f's_lshl_b32 s{sKVO}, s{sKVN}, 15')
            put(0, 'f', f's_add_u32 s{sKVO}, s{sKVO}, s{sKVB}')
            put(1, 'a', f's_xor_b32 s{sSLOT}, s{sSLOT}, 32768')
            put(1, 'c', f's_mov_b32 m0, s{sSLOT}')
            put(2, 'c', f's_add_u32 s{sKVO2}, s{sKVO}, 4096')
            put(3, 'c', f's_add_u32 m0, s{sSLOT}, 4096')
            for i in range(8):
                put(1 + i // 2, 'de'[i & 1], Ins(f'buffer_load_dwordx4 v{vKVD}, {srd(rWS)}, s{sKVO if i < 4 else sKVO2} offen offset:{1024*(i&3)} sc1 lds', tag='KV'))
            put(13, 'd', f'v_xor_b32 v{vKVR}, 32768, v{vKVR}')
            def bar():
                if not loop: self.ts('b')
                P.need('KV', *needs); P('s_waitcnt lgkmcnt(0)')
                if not loop: self.ts('b')
                P('s_barrier')
                if not loop: self.ts('b')
            ex.setdefault((14, 'pre'), []).insert(0, bar)
        for t in range(16): self.att_tile(t, first, last, ex)
        if not last and not loop: self.ts('att')

    def wd_dma(self, i):
        return Ins(f'buffer_load_dwordx4 v{vWD+(i&3)}, {srd(rWD)}, s{sWD if i < 4 else sWD2} offen offset:{1024*(i&3)} lds', tag='W')
    def wo_dma(self, i):
        return Ins(f'buffer_load_dwordx4 v{vWO+(i&3)}, {srd(rWO)}, s{sWD if i < 4 else sWD2} offen offset:{1024*(i&3)} lds', tag='W')
    def ring_reg(self, n):
        i = n % self.c.ring
        return ar(4 * i, 4) if i < 56 else vr(200 + 4 * (i - 56), 4)
    def b_load(self, n):
        return Ins(f'buffer_load_dwordx4 {self.ring_reg(n)}, v{vLN16}, {srd(rWS)}, s{sHL} offen offset:{1024*(n&3)} sc1')

    def attention(self):
        P, c = self.P, self.c
        L = vLANE
        P.seg('att_pro'); self.main.append('att_pro')
        P(f"""
        ds_read_b128 {vr(vK[0],4)}, v{vLN16} offset:0
        ds_read_b128 {vr(vK[0]+4,4)}, v{vLN16} offset:1024
        ds_read_b128 {vr(vV[0],4)}, v{vLN16} offset:2048
        ds_read_b128 {vr(vV[0]+4,4)}, v{vLN16} offset:3072
        v_mov_b32 v{vKVR}, v{vLN16}
        v_add_u32 v{vKVD}, s{sSLOT}, v{vLN16}
        """)
        for i in range(4): P(self.unpark('ONE', vONE + i))
        for q in range(2):
            P(f'{M32} {vr(vS[q],16)}, {vr(vK[0],4)}, {vr(vQF+8*q,4)}, 0')
            P(f'{M32} {vr(vS[q],16)}, {vr(vK[0]+4,4)}, {vr(vQF+8*q+4,4)}, {vr(vS[q],16)}')
            for i in range(2): P(self.unpark(f'WD{2*q+i}', vWD + 2 * q + i))
        for lvl in range(8):
            for q in range(2):
                S = vS[q]
                if lvl < 7: P(f'v_max3_f32 v{12+q}, v{S+2*lvl+1}, v{S+2*lvl+2}, v{S if lvl == 0 else 12+q}')
                else: P(f'v_max_f32 v{12+q}, v{S+15}, v{12+q}')
        for q in range(2): P(f'v_mov_b32 v{14+q}, v{12+q}')
        for q in range(2): P(f'v_permlane32_swap_b32 v{12+q}, v{14+q}')
        for q in range(2): P(f'v_max_f32 v{12+q}, v{12+q}, v{14+q}')
        for q in range(2):
            for i in range(16): P(f'v_sub_f32 v{vNM[q]+i}, 0, v{12+q}')
        P(f'{M32} {vr(vS[0],16)}, {vr(vK[0],4)}, {vr(vQF,4)}, {vr(vNM[0],16)}')
        P(f'{M32} {vr(vS[0],16)}, {vr(vK[0]+4,4)}, {vr(vQF+4,4)}, {vr(vS[0],16)}')
        self.ts('att')
        hs = [Ins(x, tag='h') for x in self.hstores]
        P.seg('att0'); self.main.append('att0')
        ex = {(1, 'pre'): [lambda: self.poll_check(1)]}
        for i in range(7): ex.setdefault((6 + i, 'd'), []).append(hs[i])
        self.att_body(True, False, ex)
        P.seg('att1'); self.main.append('att1')
        ex = {(14, 'pre'): [lambda: self.signal(3)]}
        for i in range(7): ex.setdefault((5 + i, 'd'), []).append(hs[7 + i])
        ex.setdefault((15, 'f'), []).append(f's_mov_b32 s{sIT}, 3')
        self.att_body(False, False, ex, needs=('h',))
        P.seg('att2'); self.main += ['att2', 'att2', 'att2']
        P('L_att2:')
        ex = {(6, 'c'): [f's_mov_b32 m0, s{sWM}'], (8, 'c'): [f's_add_u32 m0, s{sWM}, 4096'],
              (10, 'c'): [f's_add_u32 s{sWD}, s{sWD}, {128*2048}'], (10, 'd'): [f's_add_u32 s{sWD2}, s{sWD2}, {128*2048}'],
              (10, 'e'): [f's_add_u32 s{sWM}, s{sWM}, 32768'], (15, 'c'): [f's_sub_u32 s{sIT}, s{sIT}, 1'],
              (15, 'f'): [f's_cmp_lg_u32 s{sIT}, 0']}
        for i in range(8): ex.setdefault((6 + i // 2, 'de'[i & 1]), []).append(self.wd_dma(i))
        self.att_body(False, False, ex, loop=True)
        P('s_cbranch_scc1 L_att2')
        P.seg('att2e'); self.main.append('att2e')
        self.ts('att')
        P.seg('att5'); self.main.append('att5')
        P(self.unpark('PO', vPA))
        P(self.poll())
        n = 0
        for it in (5, 6, 7):
            if it > 5:
                P.seg(f'att{it}'); self.main.append(f'att{it}')
            ex = {}
            if it == 5:
                ex[(c.h_chk, 'pre')] = [lambda: self.poll_check(3)]
            if it == 6 and c.cpf:
                for i, x in enumerate(self.code_pf('L_norm', 20)): ex.setdefault((i // 3, 'abc'[i % 3]), []).append(x)
            if it == 6:
                ex[(4, 'a')] = [self.unpark('GA', 14)]
                ex[(4, 'b')] = [f'buffer_load_dword v{vG}, v14, {srd(rWS)}, s{sHK} offen offset:32 sc1']
            if it == 7:
                lst = [(f'R3{i}', vR3 + i) for i in range(4)] + [(f'R4{i}', vR4 + i) for i in range(2)] + [(f'WO{i}', vWO + i) for i in range(4)]
                for i, (nm, r) in enumerate(lst): P_ = ex.setdefault((10 + i // 2, 'cf'[i & 1]), []).append(self.unpark(nm, r))
            for t in range({5: c.h_chk, 6: 5, 7: 0}[it], 16):
                for k in ('de' if it < 7 or t > 3 else 'cde'):
                    if n < c.ring:
                        ex.setdefault((t, k), []).append(self.b_load(n))
                        if n & 3 == 3: ex.setdefault((t, k), []).append(f's_add_u32 s{sHL}, s{sHL}, 4096')
                        n += 1
            self.att_body(False, it == 7, ex, needs=('W',))
        assert n == c.ring
        P(f'{M32} {vr(vO[1],16)}, {vr(vV[1]+4,4)}, {vr(vP[1]+4,4)}, {vr(vO[1],16)}')
        P(f'{M16} {vr(vL[1],4)}, {vr(vONE,4)}, {vr(vP[1]+4,4)}, {vr(vL[1],4)}')
        self.ts()
        thr = hex(f2u(2.0 ** 30 if not c.force_fallback else 0.0))
        P(f"""
        s_mov_b32 s{sB}, s{sOS}
        s_add_u32 s{sC}, s{sOS}, 65536
        v_add_f32 v13, v{vL[0]}, v{vL[1]}
        v_cmp_ngt_f32 vcc, {thr}, v13
        s_cbranch_vccnz L_fallback
        """)
        self.pre_norm = list(self.main)
        P.seg('norm'); self.main.append('norm')
        P('L_norm:')
        for q in range(2): P(f'v_rcp_f32 v{12+q}, v{vL[q]}')
        for q in range(2):
            for i in range(16): P(f'v_mul_f32 v{vO[q]+i}, v{12+q}, v{vO[q]+i}')
            for i in range(8): P(f'v_cvt_pk_bf16_f32 v{vP[q]+i}, v{vO[q]+2*i}, v{vO[q]+2*i+1}')
            for cc in range(2):
                P(f'buffer_store_dwordx4 {vr(vP[q]+4*cc,4)}, v{vLN16}, {srd(rWS)}, s{sB if q == 0 else sC} offen offset:{1024*cc} sc1', tag='o')

    def fallback(self):
        P = self.P
        P.seg('fb_pro')
        P(f"""
        L_fallback:
        s_mov_b32 s{sKVO}, s{sKVB}
        s_mov_b32 s{sIT}, 64
        """)
        vM, vLL = 8, 10
        vM, vLL = 48, 50
        for q in range(2):
            P(f'v_mov_b32 v{vM+q}, 0xff800000')
            P(f'v_mov_b32 v{vLL+q}, 0')
            for i in range(16): P(f'v_mov_b32 v{vO[q]+i}, 0')
        P.seg('fb_loop')
        P('L_fb_loop:')
        for i in range(2): P(f'buffer_load_dwordx4 {vr(vK[0]+4*i,4)}, v{vLN16}, {srd(rWS)}, s{sKVO} offen offset:{1024*i} sc1')
        for i in range(2): P(f'buffer_load_dwordx4 {vr(vV[0]+4*i,4)}, v{vLN16}, {srd(rWS)}, s{sKVO} offen offset:{2048+1024*i} sc1')
        for q in range(2):
            S = vS[q]
            P(f'{M32} {vr(S,16)}, {vr(vK[0],4)}, {vr(vQF+8*q,4)}, 0')
            P(f'{M32} {vr(S,16)}, {vr(vK[0]+4,4)}, {vr(vQF+8*q+4,4)}, {vr(S,16)}')
        for q in range(2):
            S = vS[q]
            P(f'v_max3_f32 v12, v{S}, v{S+1}, v{vM+q}')
            for i in range(1, 8): P(f'v_max3_f32 v12, v{S+2*i}, v{S+2*i+1}, v12')
            P(f"""
            v_mov_b32 v13, v12
            v_permlane32_swap_b32 v12, v13
            v_max_f32 v12, v12, v13
            v_sub_f32 v13, v{vM+q}, v12
            v_exp_f32 v13, v13
            v_mov_b32 v{vM+q}, v12
            v_mul_f32 v{vLL+q}, v13, v{vLL+q}
            """)
            for i in range(16): P(f'v_mul_f32 v{vO[q]+i}, v13, v{vO[q]+i}')
            for i in range(16): P(f'v_sub_f32 v{S+i}, v{S+i}, v12')
            for i in range(16): P(f'v_exp_f32 v{S+i}, v{S+i}')
            for i in range(16): P(f'v_add_f32 v{vLL+q}, v{vLL+q}, v{S+i}')
            for i in range(8): P(f'v_cvt_pk_bf16_f32 v{vP[q]+i}, v{S+2*i}, v{S+2*i+1}')
            for m in range(2): P(f'{M32} {vr(vO[q],16)}, {vr(vV[0]+4*m,4)}, {vr(vP[q]+4*m,4)}, {vr(vO[q],16)}')
        P(f"""
        s_add_u32 s{sKVO}, s{sKVO}, 4096
        s_sub_u32 s{sIT}, s{sIT}, 1
        s_cmp_lg_u32 s{sIT}, 0
        s_cbranch_scc1 L_fb_loop
        """)
        P.seg('fb_end')
        for q in range(2):
            P(f"""
            v_mov_b32 v13, v{vLL+q}
            v_permlane32_swap_b32 v{vLL+q}, v13
            v_add_f32 v{vL[q]}, v{vLL+q}, v13
            """)
        P('s_branch L_norm')
        P.seg('annx')
        P(f'''
        L_ann:
        s_mov_b64 exec, 1
        v_mov_b32 v31, 1
        buffer_atomic_add v31, off, {srd(rDBG)}, 0 offset:252 sc1
        s_mov_b64 exec, -1
        s_nop 3
        s_branch L_annret
        ''')
        P.path('annx')
        self.emit_retries()
        P('L_codeend:')

    def stage34(self):
        P, c = self.P, self.c
        L = vLANE
        P.seg('s3_pro'); self.main.append('s3_pro')
        P('s_waitcnt lgkmcnt(0)')
        P('s_barrier')
        P(f's_lshl_b32 s{sWM}, s{sW}, 13')
        P(self.unpark('OA', vOA))

        NF3, NF = 14 * 32, 18 * 32
        DW, B, R = c.s3_dist, c.s3_bar, c.ring
        slot_of = lambda s: (s + 2) % 5
        seq = [(n // 8, n, l) for n in range(96) for l in range(4)]
        seq += [(n // 8, n, l) for half in (0, 2) for n in range(96, 112) for l in (half, half + 1)]
        seq += [(14 + (n - 112) // 16, n, l) for n in range(112, 176) for l in range(2)]
        assert len(seq) == NF
        fill, pre = {}, {}
        put = lambda p, x: fill.setdefault(p, []).append(x)
        putp = lambda p, x: pre.setdefault(p, []).append(x)
        bars = {32 * s + B: ([s + 1], [s]) for s in range(11)}
        bars[32 * 11 + B] = ([12, 13], [11])
        bars[32 * 13 + B] = ([14], [12, 13])
        for s in (14, 15, 16): bars[32 * s + B] = ([s + 1], [s])
        guard = {s: p for p, (ls, _) in bars.items() for s in ls}
        freed = {s: p for p, (_, fs) in bars.items() for s in fs}
        def reads(p):
            s, n, l = seq[p]
            slot = vWR + 4 * (p % 8)
            if s < 14: a, off, es = vR3 + l, (n % 8) * 4096, 1024
            else: a, off, es = vR4 + l, ((n - 112) % 16) * 2048, 512
            return [f'ds_read_b64_tr_b16 {vr(slot+2*e,2)}, v{a} offset:{off+e*es}' for e in range(2)]
        def mfma(p):
            s, n, l = seq[p]
            d = vA3 + 16 * l if s < 14 else vA4 + 16 * l
            return f'{M32} {vr(d,16)}, {vr(vWR+4*(p%8),4)}, {self.ring_reg(n)}, {0 if n in (0, 112) else vr(d,16)}'
        early = []
        late = {}
        rpos = {}
        for p in range(NF):
            s, n, l = seq[p]
            G = p - DW
            if s in guard and G < guard[s] + late.get(s, 0) // 2:
                G = guard[s] + late.get(s, 0) // 2; late[s] = late.get(s, 0) + 1
            assert G < p
            rpos[p] = G
            tgt = early if G < 0 else fill.setdefault(G, [])
            tgt.extend(reads(p))
            nxt = next((q for q in range(p + 1, NF) if seq[q][2] == l and (seq[q][0] < 14) == (s < 14)), None)
            if nxt is not None and seq[nxt][0] != s:
                d = (slot_of(seq[nxt][0]) - slot_of(s)) * 32768
                r = (vR3 if s < 14 else vR4) + l
                tgt.append(f'v_add_u32 v{r}, {d & 0xffffffff}, v{r}')
        for p, (ls, fs) in bars.items():
            for s in fs: assert max(rpos[q] for q in range(NF) if seq[q][0] == s) < p
            def bar(p=p, ls=ls):
                P.need(*[f'W{s}' for s in ls], *(['o'] if p == B else []), *(['part'] if p == 32 * c.part_sig + B else []))
                P('s_waitcnt lgkmcnt(0)'); P('s_barrier')
                if p == B: self.signal(7)
                if p == 32 * c.part_sig + B: self.signal(15)
            putp(p, bar)
        first = {}; lastp = {}
        for p, (s, n, l) in enumerate(seq):
            first.setdefault(n, p); lastp[n] = p
        streams = {}
        W = []
        for s in range(3, 18):
            for i in range(8):
                prex, post = [], []
                if s == 14 and i == 0:
                    prex += [f's_mov_b32 s{sWD}, s{sWO}', f's_add_u32 s{sWD2}, s{sWD}, {32*2048}']
                if i in (0, 4): prex.append(f's_add_u32 m0, s{sWM}, {slot_of(s)*32768 + 1024*i}')
                if i == 7:
                    st = 128 * 2048 if s < 14 else 256 * 2048
                    if s < 14: post += [f's_add_u32 s{sWD}, s{sWD}, {st}', f's_add_u32 s{sWD2}, s{sWD2}, {st}']
                    else: post += [f's_add_u32 s{sWD}, s{sWD}, {st}', f's_and_b32 s{sWD}, s{sWD}, 0x1fffff', f's_add_u32 s{sWD2}, s{sWD}, {32*2048}']
                x = self.wd_dma(i) if s < 14 else self.wo_dma(i)
                x.tag = f'W{s}'
                W.append(dict(e=(freed[s - 5] + 1 if s >= 5 else 1), d=guard[s] - c.margin, pre=prex, ins=x, post=post))
        streams['W'] = W
        Bq = []
        for m in range(R, 176):
            prex = [f's_lshl_b32 s{sT2}, s{sNI}, {13 if c.rot else 31}', f's_and_b32 s{sT2}, s{sT2}, 0xffff', f's_add_u32 s{sHL}, s{sOL}, s{sT2}'] if m == 112 else []
            post = []
            if m & 3 == 3:
                post = [f's_add_u32 s{sHL}, s{sHL}, 4096'] if m < 112 else [f's_add_u32 s{sT2}, s{sT2}, 4096', f's_and_b32 s{sT2}, s{sT2}, 0xffff', f's_add_u32 s{sHL}, s{sOL}, s{sT2}']
            Bq.append(dict(e=max(lastp[m - R], c.o_chk + 1 if m >= 112 else 0), d=first[m] - c.margin, pre=prex, ins=self.b_load(m), post=post))
        streams['B'] = Bq
        pdone = lastp[111] - 32 + 4
        vPK = 48
        for i in range(16): put(pdone + i // 3, f'v_cvt_pk_bf16_f32 v{vPK+i}, v{vA3+2*i}, v{vA3+2*i+1}')
        streams['S'] = [dict(e=pdone + 2 + 2 * i, d=pdone + 2 + 2 * i, pre=[], post=[], cost=c.stcost,
                             ins=Ins(f'buffer_store_dwordx4 {vr(vPK+4*i,4)}, v{vLN16}, {srd(rWS)}, s{sPO} offen offset:{1024*i} sc1', tag='part')) for i in range(4)]
        streams['L'] = [dict(e=c.part_chk + i, d=c.part_chk + i, pre=[], post=[],
                             ins=Ins(f'buffer_load_dwordx4 {vr(vPK+4*i,4)}, v{vLN16}, {srd(rWS)}, s{sPO} offen offset:{1024*i} sc1')) for i in range(4)]
        credit = c.credit0; slack = []
        self.sched = []
        for p in range(1, NF):
            credit = min(credit + 1.0 / c.vrate, 2.0)
            cand = [(q[0]['d'], k) for k, q in streams.items() if q and q[0]['e'] <= p]
            if not cand: continue
            d, k = min(cand)
            if credit >= 1.0 or d <= p:
                op = streams[k].pop(0); credit -= op.get('cost', 1.0)
                for x in op['pre']: put(p - 1, x)
                put(p, op['ins'])
                for x in op['post']: put(p, x)
                slack.append(d - p); self.sched.append((p, k, d))
        assert not any(streams.values()), {k: len(q) for k, q in streams.items()}
        print('vmem schedule: min slack', min(slack), 'first O load at', next(p for (p, k, d), in zip(self.sched) if k == 'B' and d >= first[112] - c.margin),
              'last op', self.sched[-1])
        put(c.o_poll, self.poll())
        putp(c.o_chk, lambda: self.poll_check(7))
        q0 = max(p for p, k, d in self.sched if k == 'S') + 1
        put(q0, f's_xor_b32 s{sPO}, s{sPO}, {4 << 13}')
        put(q0 + 2, f's_xor_b32 s{sT1}, s{sIDX}, 32')
        put(q0 + 3, f's_lshl_b32 s{sT1}, s{sT1}, 7')
        put(q0 + 4, f'v_mov_b32 v{vPA}, s{sT1}')
        put(c.part_poll, self.poll())
        putp(c.part_chk, lambda: self.poll_check(15))
        put(NF - 48, f'v_sub_f32 v12, 1.0, v{vG}')
        put(NF - 47, f'v_cvt_pk_bf16_f32 v12, v12, v12')
        put(NF - 46, f'v_and_b32 v12, 0xffff0000, v12')
        put(NF - 45, f's_lshl_b32 s{sT0}, s{sNI}, 8')
        put(NF - 44, f's_lshl_b32 s{sT1}, s{sKH}, 7')
        put(NF - 43, f's_add_u32 s{sT0}, s{sT0}, s{sT1}')
        tailops = []
        for i in range(16):
            tailops += [f'v_lshlrev_b32 v{vPP+2*i}, 16, v{vPK+i}', f'v_and_b32 v{vPP+2*i+1}, 0xffff0000, v{vPK+i}',
                        f'v_add_f32 v{vPP+2*i}, v{vPP+2*i}, v{vA3+32+2*i}', f'v_add_f32 v{vPP+2*i+1}, v{vPP+2*i+1}, v{vA3+32+2*i+1}',
                        f'v_mul_f32 v{vPP+2*i}, v12, v{vPP+2*i}', f'v_mul_f32 v{vPP+2*i+1}, v12, v{vPP+2*i+1}']
        p = c.tail_at
        while tailops and p < NF:
            k = 2 if p < NF - DW else 5
            for x in tailops[:k]: put(p, x)
            tailops = tailops[k:]; p += 1
        for x in early: P(x)
        for p in range(NF):
            for x in pre.get(p, []): x()
            if p == NF3: self.ts()
            elif p % 64 == 0: self.ts('s3')
            P(mfma(p))
            for x in fill.get(p, []):
                if isinstance(x, Ins): P.add(x)
                else: P(x)
        self.ts()
        for x in tailops: P(x)
        for nt in range(2):
            for hh in range(2):
                r0 = 16 * nt + 8 * hh
                for i in range(8): P(f'v_fma_f32 v{vPP+r0+i}, v{vA4+r0+i}, v{vG}, v{vPP+r0+i}')
                d = vWR + 4 * (2 * nt + hh)
                for i in range(4): P(f'v_cvt_pk_bf16_f32 v{d+i}, v{vPP+r0+2*i}, v{vPP+r0+2*i+1}')
                P(f'v_permlane32_swap_b32 v{d}, v{d+2}')
                P(f'v_permlane32_swap_b32 v{d+1}, v{d+3}')
                P(f'buffer_store_dwordx4 {vr(d,4)}, v{vOA}, {srd(rOUT)}, s{sT0} offen offset:{64*nt+32*hh}')

    def signal(self, val, tag=None, ins=None, reg=5):
        P = self.P
        k = len(P.segs)
        P(f'''
        s_cmp_lg_u32 s{sW}, 0
        s_cbranch_scc1 L_sig{k}
        ''')
        P.seg(f'sig{k}'); self.main.append(f'sig{k}')
        P(f'''
        s_mov_b64 exec, 1
        v_mov_b32 v{reg}, {val}
        {ins or f'buffer_store_dword v{reg}, off, {srd(rWS)}, s{sA} sc1'}
        s_mov_b64 exec, -1
        ''', tag=tag)
        P.seg(f'sig{k}e'); self.main.append(f'sig{k}e')
        P(f'L_sig{k}:')

    def spin_check(self, reload, cmp):
        P = self.P
        k = len(self.retries)
        P(cmp)
        P(f's_cbranch_vccnz L_retry{k}')
        P(f'L_cont{k}:')
        self.retries.append((reload, cmp))

    def emit_retries(self):
        P = self.P
        for k, (reload, cmp) in enumerate(self.retries):
            P.seg(f'retry{k}')
            P(f"""
            L_retry{k}:
            s_mov_b32 s{sT3}, 0
            L_spin{k}:
            s_add_u32 s{sT3}, s{sT3}, 1
            s_cmp_gt_u32 s{sT3}, {self.c.spin_max}
            s_cbranch_scc1 L_end
            s_sleep 2
            {reload}
            s_waitcnt vmcnt(0)
            {cmp}
            s_cbranch_vccnz L_spin{k}
            s_branch L_cont{k}
            """)
            P.path(f'retry{k}', f'retry{k}')

    def finish(self):
        P, c = self.P, self.c
        P.seg('fin'); self.main.append('fin')
        if c.diag:
            self.ts()
            P(f'''
            {self.amp_code()}
            s_getreg_b32 s{sT0}, hwreg(HW_REG_XCC_ID)
            s_and_b32 s{sT0}, s{sT0}, 15
            v_writelane_b32 v{vTS}, s{sT0}, 31
            s_lshl_b32 s{sT0}, s2, 2
            s_add_u32 s{sT0}, s{sT0}, s{sW}
            s_lshl_b32 s{sT0}, s{sT0}, 8
            s_add_u32 s{sT0}, s{sT0}, {WS_TS}
            v_lshlrev_b32 v2, 2, v{vLANE}
            buffer_store_dword v{vTS}, v2, {srd(rWS)}, s{sT0} offen
            ''')
        P('''
        L_end:
        s_endpgm
        ''')

    def amp_code(self):
        if not self.c.amp: return ''
        a, b, k = self.c.amp
        return f'''
            v_readlane_b32 s{sT0}, v{vTS}, {a}
            v_readlane_b32 s{sT1}, v{vTS}, {b}
            s_nop 3
            s_sub_u32 s{sT0}, s{sT1}, s{sT0}
            s_mul_i32 s{sT0}, s{sT0}, {k}
            s_min_u32 s{sT0}, s{sT0}, 100000
            s_add_u32 s{sT0}, s{sT0}, s{sTS}
            s_mov_b32 s{sT2}, 0
            L_amp:
            s_memrealtime s[{sTS}:{sTS+1}]
            s_add_u32 s{sT2}, s{sT2}, 1
            s_waitcnt lgkmcnt(0)
            s_cmp_gt_u32 s{sT2}, 200000
            s_cbranch_scc1 L_ampx
            s_sub_u32 s{sT1}, s{sTS}, s{sT0}
            s_cmp_lt_i32 s{sT1}, 0
            s_cbranch_scc1 L_amp
            L_ampx:
        '''

    def dump_q(self):
        P = self.P
        P.seg('dumpq'); self.main.append('dumpq')
        P(f'''
        s_lshl_b32 s{sT0}, s2, 2
        s_add_u32 s{sT0}, s{sT0}, s{sW}
        s_lshl_b32 s{sT0}, s{sT0}, 12
        s_add_u32 s{sT0}, s{sT0}, {WS_DBG}
        v_lshlrev_b32 v2, 4, v{vLANE}
        ''')
        for i in range(4):
            P(f'buffer_store_dwordx4 {vr(vQF+4*i,4)}, v2, {srd(rWS)}, s{sT0} offen offset:{1024*i}')

    def build(self):
        c = self.c
        self.prologue()
        self.p1_main()
        self.p1_epilogue()
        if c.stop_after == 'p1':
            for x in self.hstores: self.P(x)
            self.dump_q()
        else:
            self.attention()
            if c.stop_after != 'att': self.stage34()
        self.finish()
        P = self.P
        if c.stop_after != 'p1':
            self.fallback()
            P.path(*(self.pre_norm + ['fb_pro', 'fb_loop', 'fb_loop', 'fb_end'] + self.main[len(self.pre_norm):]))
        P.path(*self.main)
        P.path(*[n for n in self.main if not (n.startswith('sig') and not n.endswith('e'))])
        P.finalize()
        ref = open(f'cdna_kernels/{NAME}.s.ref').read()
        head = [l for l in ref.split('\n') if l.startswith(';') and '@launch' not in l and 'Override launch' not in l and 'grid=ceil' not in l]
        out = '\n'.join(head) + f'''
; @launch grid=(256,1,1) block=(256,1,1) lds={LDS_BYTES}
.amdgcn_target "amdgcn-amd-amdhsa--gfx950"
.text
.globl {NAME}_kernel
.p2align 8
.type {NAME}_kernel,@function
{NAME}_kernel:
''' + P.text() + f'''.section .rodata,"a"
.p2align 6
.amdhsa_kernel {NAME}_kernel
  .amdhsa_next_free_vgpr 512
  .amdhsa_next_free_sgpr 102
  .amdhsa_accum_offset 256
  .amdhsa_group_segment_fixed_size 0
  .amdhsa_kernarg_size 88
  .amdhsa_user_sgpr_count 2
  .amdhsa_user_sgpr_kernarg_segment_ptr 1
  .amdhsa_system_sgpr_workgroup_id_x 1
.end_amdhsa_kernel
'''
        return out

if __name__ == '__main__':
    cfg = Cfg()
    outp = f'cdna_kernels/{NAME}.s'
    for a in sys.argv[1:]:
        if a.startswith('-o'): outp = a[2:]
        else:
            k, v = a.split('=')
            setattr(cfg, k, eval(v))
    g = Gen(cfg)
    s = g.build()
    open(outp, 'w').write(s)
    g.P.stats()
    print('wrote', outp, len(s), 'bytes', 'nts', g.nts)
```
